```python
import torch

def _softmax(x, axis=-1):
    return torch.softmax(x, dim=axis)
def _gelu(x):
    return torch.nn.functional.gelu(x, approximate="tanh")
def _silu(x):
    return torch.nn.functional.silu(x)
def _sigmoid(x):
    return torch.sigmoid(x)
def _layernorm(x, axis=-1, eps=1e-5):
    m = x.mean(dim=axis, keepdim=True)
    v = x.var(dim=axis, keepdim=True, unbiased=False)
    return (x - m) / torch.sqrt(v + eps)
def _scatter_add(tgt, idx, src, axis=0):
    return tgt.clone().index_add_(axis, idx, src)
def _segment_sum(src, seg, n):
    out = torch.zeros((n,) + src.shape[1:], dtype=src.dtype)
    return out.index_add_(0, seg, src)
def _pad(x, pw):
    flat = tuple(v for pair in reversed(pw) for v in pair)
    return torch.nn.functional.pad(x, flat)

kernel_name = 'parallel_sum__sliding_block_cached__mixer_channel_mlp__decode'

def setup_inputs():

    _w = (lambda a: (lambda t: t.to(torch.bfloat16) if t.is_floating_point() else t)(torch.as_tensor(a)))
    def _A_setup():
        B, Sq, D = 1, 1, 576
        Hq, Hkv, Sk, Dh = 32, 16, 65536, 128
        assert Hq % Hkv == 0, (Hq, Hkv)
        return {
            "x": _w((lambda *s: torch.randn(*s, dtype=torch.bfloat16) * 0.05)(B, Sq, D)),
            "k_cache": _w((lambda *s: torch.randn(*s, dtype=torch.bfloat16) * 3.2)(B, Hkv, Sk, Dh)),
            "v_cache": _w((lambda *s: torch.randn(*s, dtype=torch.bfloat16) * 0.4)(B, Hkv, Sk, Dh)),
            "wq": _w((lambda *s: torch.randn(*s, dtype=torch.bfloat16) * 3.2)(D, Hq * Dh) * (D ** -0.5)),
            "wo": _w((lambda *s: torch.randn(*s, dtype=torch.bfloat16) * 0.4)(Hq * Dh, D) * ((Hq * Dh) ** -0.5)),
        }
    _A_in = _A_setup()

    def _B_setup():
        B, S, D, F = 1, 1, 576, 4608
        return {
            "x": _w((lambda *s: torch.randn(*s, dtype=torch.bfloat16) * 0.05)(B, S, D)),
            "w1": _w((lambda *s: torch.randn(*s, dtype=torch.bfloat16) * 3.2)(D, F) * (D ** -0.5)),
            "b1": _w((lambda *s: torch.randn(*s, dtype=torch.bfloat16) * 0.8)(F)),
            "w2": _w((lambda *s: torch.randn(*s, dtype=torch.bfloat16) * 0.1)(F, D) * (F ** -0.5)),
            "b2": _w((lambda *s: torch.randn(*s, dtype=torch.bfloat16) * 0.1)(D)),
        }
    _B_in = _B_setup()

    return {
        "A_x": _A_in["x"],
        "A_k_cache": _A_in["k_cache"],
        "A_v_cache": _A_in["v_cache"],
        "A_wq": _A_in["wq"],
        "A_wo": _A_in["wo"],
        "B_x": _B_in["x"],
        "B_w1": _B_in["w1"],
        "B_b1": _B_in["b1"],
        "B_w2": _B_in["w2"],
        "B_b2": _B_in["b2"],
    }

def reference(A_x, A_k_cache, A_v_cache, A_wq, A_wo, B_x, B_w1, B_b1, B_w2, B_b2):
    def _A_ref(x, k_cache, v_cache, wq, wo):
        B, Sq, D = x.shape
        Hq, Dh = 32, 128
        Hkv, Sk = k_cache.shape[1], k_cache.shape[2]
        W = min(4096, max(256, Sk // 4))
        rep = Hq // Hkv
        q = (lambda x, *d: x.permute(*d))((x @ wq).reshape(B, Sq, Hq, Dh), 0, 2, 1, 3)
        k = (lambda x, n, axis: torch.repeat_interleave(x, n, dim=axis))(k_cache[:, :, Sk - W:, :], rep, axis=1)
        v = (lambda x, n, axis: torch.repeat_interleave(x, n, dim=axis))(v_cache[:, :, Sk - W:, :], rep, axis=1)
        scores = torch.einsum("bhqd,bhkd->bhqk", q, k) * (Dh ** -0.5)
        p = _softmax(scores, axis=-1)
        o = torch.einsum("bhqk,bhkd->bhqd", p, v)
        return (lambda x, *d: x.permute(*d))(o, 0, 2, 1, 3).reshape(B, Sq, Hq * Dh) @ wo

    def _B_ref(x, w1, b1, w2, b2):
        y = _layernorm(x, axis=-1)
        h = _gelu(torch.einsum("bsd,df->bsf", y, w1) + b1)
        return torch.einsum("bsf,fd->bsd", h, w2) + b2

    x = A_x
    xn = _layernorm(x, axis=-1)
    return x + _A_ref(xn, A_k_cache, A_v_cache, A_wq, A_wo) + _B_ref(xn, B_w1, B_b1, B_w2, B_b2)
```

```python
import sys
NAME = "parallel_sum__sliding_block_cached__mixer_channel_mlp__decode"
STAMPS = "--stamps" in sys.argv
NOPOLL = "--nopoll" in sys.argv
PACE = 3; PACE2 = None; HPACE = 3; PRE = 3
for a in sys.argv[1:]:
    if a.startswith("--pace="): PACE = int(a.split("=")[1])
    if a.startswith("--pace2="): PACE2 = int(a.split("=")[1])
    if a.startswith("--hpace="): HPACE = int(a.split("=")[1])
    if a.startswith("--pre="): PRE = int(a.split("=")[1])
if PACE2 is None: PACE2 = PACE
SPIN = "1" if NOPOLL else "0x40000"

QP_OFF, HP_OFF, OPD_OFF, OPM_OFF, FPA_OFF, FPB_OFF, STAMP_OFF = 0x1000, 0x12000, 0x20000, 0x60000, 0x64000, 0xB0000, 0x200000
C_G1, C_Q, C_M, C_G2, C_PV, C_G3, C_H = 0, 4, 8, 16, 20, 24, 28
XN, Y, QL, WM, WL, HL, OL, PV = 0x100, 0xB00, 0x1500, 0x1700, 0x1740, 0x1800, 0x1900, 0x2000
PQ, PH, PBP, PA, RA, RB = 0x4000, 0x5000, 0x6000, 0x8000, 0xD000, 0xD800
TQ, TH = 0xE000, 0x12800
LDS_BYTES = 0x18800
RED0 = 238
TOR = 120

out = []
def P(s=""):
    for line in s.strip("\n").split("\n"):
        out.append(line)
uid = [0]
def L(base):
    uid[0] += 1
    return f"L_{base}_{uid[0]}"
def STAMP(idx):
    if STAMPS:
        P(f"    s_memrealtime s[{84+2*idx}:{85+2*idx}]")
def srd(d, ptr, nbytes):
    P(f"""
    s_mov_b32 s{d}, s{ptr}
    s_and_b32 s{d+1}, s{ptr+1}, 0xffff
    s_mov_b32 s{d+2}, {nbytes}
    s_mov_b32 s{d+3}, 0x00020000""")
def EX(mask):
    return f"s_mov_b32 exec_lo, {hex(mask & 0xffffffff)}\n    s_mov_b32 exec_hi, {hex(mask >> 32)}"
def rowreduce(op, v):
    for ror in (8, 4, 2, 1):
        P(f"    s_nop 1\n    {op}_dpp v{v}, v{v}, v{v} row_ror:{ror} row_mask:0xf bank_mask:0xf")
def crossrow(op, v):
    P(f"""
    s_nop 0
    v_readlane_b32 s80, v{v}, 0
    v_readlane_b32 s81, v{v}, 16
    v_readlane_b32 s82, v{v}, 32
    v_readlane_b32 s83, v{v}, 48
    v_mov_b32 v{v}, s80
    {op} v{v}, s81, v{v}
    {op} v{v}, s82, v{v}
    {op} v{v}, s83, v{v}""")
def cnt_add(off, va, vb):
    P(f"""
    s_waitcnt lgkmcnt(0)
    v_mov_b32 v{va}, {off}
    v_mov_b32 v{vb}, 1
    s_mov_b64 exec, 1
    ds_add_u32 v{va}, v{vb}
    s_mov_b64 exec, -1""")
def cnt_wait(off, target, vt, sleep=1):
    l0, l1 = L("cw"), L("cwd")
    P(f"""
    s_mov_b32 s79, 0x40000
{l0}:
    v_mov_b32 v{vt}, {off}
    ds_read_b32 v{vt}, v{vt}
    s_waitcnt lgkmcnt(0)
    v_readfirstlane_b32 s78, v{vt}
    s_cmp_ge_u32 s78, {target}
    s_cbranch_scc1 {l1}
    {"s_sleep %d" % sleep if sleep else ""}
    s_sub_u32 s79, s79, 1
    s_cmp_lg_u32 s79, 0
    s_cbranch_scc1 {l0}
{l1}:""")
def bf16r2(a, b, t):
    P(f"""
    v_cvt_pk_bf16_f32 v{t}, v{a}, v{b}
    v_lshlrev_b32 v{a}, 16, v{t}
    v_and_b32 v{b}, 0xffff0000, v{t}""")
def bf16r1(a):
    P(f"""
    v_cvt_pk_bf16_f32 v{a}, v{a}, v{a}
    v_lshlrev_b32 v{a}, 16, v{a}""")
def unpack4(src, dst):
    P(f"""
    v_lshlrev_b32 v{dst}, 16, v{src}
    v_and_b32 v{dst+1}, 0xffff0000, v{src}
    v_lshlrev_b32 v{dst+2}, 16, v{src+1}
    v_and_b32 v{dst+3}, 0xffff0000, v{src+1}""")
def tag4(r):
    for k in range(4):
        P(f"    v_and_or_b32 v{r+k}, v{r+k}, v1, s{64+k}")
def untag4(r):
    for k in range(4):
        P(f"    v_and_b32 v{r+k}, v1, v{r+k}")
def check(regs, t, okl):
    first = True
    for r in regs:
        if first:
            P(f"""
    v_xor_b32 v{t}, s64, v{r}
    v_xor_b32 v{t+1}, s65, v{r+1}
    v_xor_b32 v{t+2}, s66, v{r+2}
    v_or3_b32 v{t}, v{t}, v{t+1}, v{t+2}
    v_xor_b32 v{t+1}, s67, v{r+3}
    v_or_b32 v{t}, v{t}, v{t+1}""")
            first = False
        else:
            P(f"""
    v_xor_b32 v{t+1}, s64, v{r}
    v_xor_b32 v{t+2}, s65, v{r+1}
    v_or3_b32 v{t}, v{t}, v{t+1}, v{t+2}
    v_xor_b32 v{t+1}, s66, v{r+2}
    v_xor_b32 v{t+2}, s67, v{r+3}
    v_or3_b32 v{t}, v{t}, v{t+1}, v{t+2}""")
    P(f"""
    v_and_b32 v{t}, 0xff, v{t}
    v_cmp_ne_u32 vcc, 0, v{t}
    s_nop 1
    s_cbranch_vccz {okl}""")
def polltail(lp, sleep):
    P(f"""
    {"s_sleep %d" % sleep if sleep else ""}
    s_sub_u32 s79, s79, 1
    s_cmp_lg_u32 s79, 0
    s_cbranch_scc1 {lp}""")
def allreduce_rows4(r, t):
    for k in range(4): P(f"    v_mov_b32 v{t+k}, v{r+k}")
    P("    s_nop 1")
    for k in range(4): P(f"    v_permlane16_swap_b32 v{r+k}, v{t+k}")
    for k in range(4): P(f"    v_add_f32 v{r+k}, v{r+k}, v{t+k}")
    for k in range(4): P(f"    v_mov_b32 v{t+k}, v{r+k}")
    P("    s_nop 1")
    for k in range(4): P(f"    v_permlane32_swap_b32 v{r+k}, v{t+k}")
    for k in range(4): P(f"    v_add_f32 v{r+k}, v{r+k}, v{t+k}")
E = 8
def layernorm(ldsoff):
    P(f"    v_add_f32 v4, v{E}, v{E+1}")
    for k in range(2, 10):
        P(f"    v_add_f32 v4, v4, v{E+k}")
    rowreduce("v_add_f32", 4); crossrow("v_add_f32", 4)
    P(f"    s_mov_b32 s10, 0x3ae38e39\n    v_mul_f32 v4, s10, v4      ; mean")
    P("    v_mov_b32 v5, 0")
    for k in range(10):
        P(f"    v_sub_f32 v6, v{E+k}, v4")
        if k >= 8:
            P("    v_mul_f32 v6, v6, v30")
        P("    v_fmac_f32 v5, v6, v6")
    rowreduce("v_add_f32", 5); crossrow("v_add_f32", 5)
    P("    v_mul_f32 v5, s10, v5      ; var")
    bf16r2(4, 5, 6)
    P("    v_add_f32 v5, 0x3727c5ac, v5")
    bf16r1(5)
    P("    v_sqrt_f32 v5, v5\n    s_nop 0")
    bf16r1(5)
    P("    v_rcp_f32 v7, v5\n    s_nop 0")
    for k in range(0, 10, 2):
        a, b = E + k, E + k + 1
        P(f"    v_sub_f32 v{a}, v{a}, v4\n    v_sub_f32 v{b}, v{b}, v4")
        bf16r2(a, b, 6)
        for t in (a, b):
            P(f"""
    v_mul_f32 v6, v{t}, v7
    v_fma_f32 v{t}, -v6, v5, v{t}
    v_fma_f32 v{t}, v{t}, v7, v6""")
        bf16r2(a, b, 6)
    P(f"    v_mul_f32 v{E+8}, v{E+8}, v30\n    v_mul_f32 v{E+9}, v{E+9}, v30")
    if ldsoff is not None:
        P(f"""
    v_lshlrev_b32 v6, 5, v0
    v_lshlrev_b32 v7, 3, v0
    ds_write_b128 v6, v[{E}:{E+3}] offset:{ldsoff}
    ds_write_b128 v6, v[{E+4}:{E+7}] offset:{ldsoff+16}
    ds_write_b64 v7, v[{E+8}:{E+9}] offset:{ldsoff+2048}""")
def tile_dma(srdn, stride_log_or_mul, nrows, ldsbase, stride):
    P(f"""
    v_lshrrev_b32 v4, 3, v0
    s_mov_b32 s14, {stride}
    v_mul_lo_u32 v4, v4, s14
    v_and_b32 v5, 7, v0
    v_lshl_add_u32 v4, v5, 4, v4
    s_mul_i32 s12, s8, {nrows*128}
    s_add_u32 s12, s12, {ldsbase}""")
    nl = (nrows + 7) // 8
    for i in range(nl):
        rem = nrows - 8 * i
        if rem < 8:
            P("    " + EX((1 << (8 * rem)) - 1))
        P(f"""
    s_mov_b32 m0, s12
    s_nop 0
    buffer_load_dwordx4 v4, s[{srdn}:{srdn+3}], s11 offen nt lds
    s_add_u32 s11, s11, {8*stride}
    s_add_u32 s12, s12, 1024""")
        if rem < 8:
            P("    s_mov_b64 exec, -1")
    return nl
def tile_gemv(nrows, ldsbase, multsreg, multoff, partoff, cntoff, pub_sexpr_code):
    n = nrows // 4
    P(f"""
    v_and_b32 v3, 15, v0
    v_lshrrev_b32 v4, 4, v0               ; ph
    s_mul_i32 s12, s8, {nrows*128}
    s_add_u32 s12, s12, {ldsbase}
    v_lshlrev_b32 v5, 7, v4
    v_lshl_add_u32 v5, v3, 3, v5
    v_add_u32 v5, s12, v5
    s_lshl_b32 s12, {multsreg}, 2
    v_lshl_add_u32 v6, v4, 2, s12
""")
    for i in range(n):
        P(f"    ds_read_b64 v[{32+2*i}:{33+2*i}], v5 offset:{512*i}\n    ds_read_b32 v{56+i}, v6 offset:{multoff+16*i}")
    P("    v_mov_b32 v20, 0\n    v_mov_b32 v21, 0\n    v_mov_b32 v22, 0\n    v_mov_b32 v23, 0")
    for i in range(n):
        P(f"    s_waitcnt lgkmcnt({min(15, 2*(n-1-i))})")
        unpack4(32 + 2 * i, 72)
        for k in range(4):
            P(f"    v_fmac_f32 v{20+k}, v{56+i}, v{72+k}")
    P(f"""
    s_lshl_b32 s12, s8, 10
    v_lshlrev_b32 v5, 8, v4
    v_lshl_add_u32 v5, v3, 4, v5
    v_add_u32 v5, s12, v5
    ds_write_b128 v5, v[20:23] offset:{partoff}
""")
    cnt_add(cntoff, 3, 4)
    skip = L("nos2")
    P(f"    s_cmp_eq_u32 s8, 0\n    s_cbranch_scc0 {skip}")
    cnt_wait(cntoff, 4, 3, sleep=0)
    P(f"""
    v_and_b32 v3, 15, v0
    v_lshlrev_b32 v3, 4, v3
    v_lshrrev_b32 v4, 4, v0
    v_lshl_add_u32 v3, v4, 10, v3
    ds_read_b128 v[20:23], v3 offset:{partoff}
    ds_read_b128 v[32:35], v3 offset:{partoff+256}
    ds_read_b128 v[36:39], v3 offset:{partoff+512}
    ds_read_b128 v[40:43], v3 offset:{partoff+768}
    s_waitcnt lgkmcnt(0)""")
    for k in range(4):
        P(f"    v_add_f32 v{20+k}, v{20+k}, v{32+k}\n    v_add_f32 v{36+k}, v{36+k}, v{40+k}")
    for k in range(4):
        P(f"    v_add_f32 v{20+k}, v{20+k}, v{36+k}")
    allreduce_rows4(20, 32)
    tag4(20)
    P(pub_sexpr_code)
    P(f"""
    {EX(0xffff)}
    buffer_store_dwordx4 v[20:23], v2, s[44:47], s11 offen sc1
    s_mov_b64 exec, -1
{skip}:""")
def tags_ready():
    P(f"""
    s_add_u32 s42, s42, 1
    s_and_b32 s64, s42, 0xff
    s_bfe_u32 s65, s42, 0x80008
    s_bfe_u32 s66, s42, 0x80010
    s_lshr_b32 s67, s42, 24""")
def xprep(nafter):
    P(f"""
    v_cmp_gt_u32 vcc, 32, v0
    v_mov_b32 v30, 0
    v_mov_b32 v31, 1.0
    s_nop 0
    v_cndmask_b32 v30, v30, v31, vcc
    s_waitcnt vmcnt({nafter})
""")
    STAMP(1)
    unpack4(24, E); unpack4(26, E + 4)
    P(f"    v_lshlrev_b32 v{E+8}, 16, v28\n    v_and_b32 v{E+9}, 0xffff0000, v28")
def to_loads():
    P(f"""
    s_lshr_b32 s11, s2, 1                 ; rg
    s_lshl_b32 s11, s11, 5
    s_lshl_b32 s12, s3, 1
    s_add_u32 s11, s11, s12
    s_mul_i32 s11, s11, 1152
    s_add_u32 s11, s11, s72               ; + ch*640
    s_mov_b64 exec, s[70:71]
    buffer_load_dwordx4 v[{TOR}:{TOR+3}], v2, s[60:63], s11 offen nt
    buffer_load_dwordx4 v[{TOR+4}:{TOR+7}], v2, s[60:63], s11 offen offset:1152 nt
    s_mov_b64 exec, -1""")

P(f"""; fused decode kernel: LN -> {{q-proj -> sliding-window GQA attention -> o-proj}} + {{LN -> MLP}} + residual
; @launch grid=(256,1,1) block=(1024,1,1) lds={LDS_BYTES}
.amdgcn_target "amdgcn-amd-amdhsa--gfx950"
.text
.globl {NAME}_kernel
.p2align 8
.type {NAME}_kernel,@function
{NAME}_kernel:
    s_cmp_ge_u32 s2, 256
    s_cbranch_scc1 L_end""")
STAMP(0)
P(f"""
    s_load_dwordx16 s[16:31], s[0:1], 0
    s_load_dwordx8 s[32:39], s[0:1], 64
    s_load_dwordx2 s[40:41], s[0:1], 96
    v_lshrrev_b32 v1, 6, v0
    v_and_b32 v0, 63, v0
    v_readfirstlane_b32 s3, v1
    v_lshlrev_b32 v2, 4, v0               ; lane*16
    v_mov_b32 v1, 0xffffff00
    s_lshr_b32 s4, s2, 4                  ; g
    s_and_b32 s5, s2, 15                  ; s
    s_lshr_b32 s6, s2, 1
    s_and_b32 s7, s2, 1                   ; ch
    s_mul_i32 s72, s7, 640
    s_mov_b32 s70, -1
    s_cmp_eq_u32 s7, 0
    s_cselect_b32 s71, 0xff, 0
    s_waitcnt lgkmcnt(0)
    s_load_dword s42, s[40:41], 0
""")
srd(44, 40, 0x40000000)
srd(60, 24, 4718592)
P("""
    s_cmp_ge_u32 s3, 8
    s_cbranch_scc1 L_stream
""")
srd(48, 16, 1152)
P(f"""
    s_and_b32 s8, s3, 3                   ; j
    v_lshlrev_b32 v3, 2, v0
    buffer_load_dwordx4 v[24:27], v2, s[48:51], 0 offen
    buffer_load_dword v28, v3, s[48:51], 0 offen offset:1024
    s_cmp_ge_u32 s3, 4
    s_cbranch_scc1 L_hh
""")
srd(52, 22, 4718592)
P(f"""
    s_lshr_b32 s9, s5, 2                  ; kq
    s_and_b32 s10, s5, 3                  ; cq
    s_mul_i32 s11, s9, 144
    s_mul_i32 s12, s8, 36
    s_add_u32 s73, s11, s12
    s_lshl_b32 s11, s73, 13               ; *8192
    s_lshl_b32 s12, s4, 9
    s_add_u32 s11, s11, s12
    s_lshl_b32 s12, s10, 7
    s_add_u32 s11, s11, s12
""")
nq = tile_dma(52, None, 36, TQ, 8192)
to_loads()
P(f"""
    s_cmp_lg_u32 s3, 0
    s_cbranch_scc1 L_h_noinit
    v_lshlrev_b32 v3, 2, v0
    v_mov_b32 v4, 0
    ds_write_b32 v3, v4
L_h_noinit:
    s_waitcnt lgkmcnt(0)
    s_barrier                             ; B0
""")
tags_ready()
xprep(nq + 2)
layernorm(XN)
P("    s_waitcnt vmcnt(2) lgkmcnt(0)")
tile_gemv(36, TQ, "s73", XN, PQ, C_G1, f"""
    s_lshr_b32 s11, s5, 2
    s_lshl_b32 s11, s11, 14               ; kq*16384
    s_lshl_b32 s12, s4, 10                ; 256g*4
    s_add_u32 s11, s11, s12
    s_and_b32 s12, s5, 3
    s_lshl_b32 s12, s12, 8                ; 64cq*4
    s_add_u32 s11, s11, s12
    s_add_u32 s11, s11, {QP_OFF}""")
STAMP(2)
lp = L("h1poll"); ld = L("h1done")
P(f"""
    s_lshl_b32 s11, s4, 10
    s_lshl_b32 s12, s8, 8
    s_add_u32 s11, s11, s12
    s_add_u32 s11, s11, {QP_OFF}
    v_lshrrev_b32 v4, 4, v0
    v_lshlrev_b32 v4, 14, v4
    v_and_b32 v5, 15, v0
    v_lshl_add_u32 v4, v5, 4, v4
    s_mov_b32 s79, {SPIN}
{lp}:
    buffer_load_dwordx4 v[32:35], v4, s[44:47], s11 offen sc1
    s_waitcnt vmcnt(0)""")
check([32], 40, ld)
polltail(lp, 8)
P(f"{ld}:")
untag4(32)
allreduce_rows4(32, 36)
P(f"""
    v_cvt_pk_bf16_f32 v32, v32, v33
    v_cvt_pk_bf16_f32 v33, v34, v35
    v_lshlrev_b32 v5, 3, v5
    s_lshl_b32 s12, s8, 7
    v_add_u32 v5, s12, v5
    {EX(0xffff)}
    ds_write_b64 v5, v[32:33] offset:{QL}
    s_mov_b64 exec, -1
""")
cnt_add(C_Q, 3, 4)
STAMP(3)
P("    s_branch L_prefinal")
P("L_hh:")
srd(56, 28, 5308416)
srd(64+4, 32, 5308416)
out.pop(); out.pop(); out.pop(); out.pop()
srd(52, 32, 5308416)
srd(76-20, 28, 5308416)
P(f"""
    s_mov_b32 s75, 0
    s_cmp_ge_u32 s2, 216
    s_cbranch_scc1 L_hh_noth0
    s_mul_i32 s9, s2, 43691
    s_lshr_b32 s9, s9, 17                 ; cg = b/3
    s_mul_i32 s10, s9, 3
    s_sub_u32 s10, s2, s10                ; kq' = b%3
    s_mul_i32 s11, s10, 192
    s_mul_i32 s12, s8, 48
    s_add_u32 s73, s11, s12
    s_mul_i32 s11, s73, 9216
    s_lshl_b32 s12, s9, 7
    s_add_u32 s11, s11, s12
""")
nh = tile_dma(56, None, 48, TH, 9216)
P("L_hh_noth0:")
to_loads()
TMR = 84
P(f"""
    s_mul_i32 s11, s6, 36
    s_mul_i32 s12, s8, 9
    s_add_u32 s11, s11, s12
    s_mul_i32 s11, s11, 1152
    s_add_u32 s74, s11, s72
    s_waitcnt lgkmcnt(0)
    s_barrier                             ; B0
""")
tags_ready()
P("""
    s_cmp_ge_u32 s2, 216
    s_cbranch_scc1 L_hh_x2
""")
P(f"    s_waitcnt vmcnt({nh+2})\n    s_branch L_hh_x3\nL_hh_x2:\n    s_waitcnt vmcnt(2)\nL_hh_x3:")
xprep(63)
layernorm(None)
layernorm(Y)
P("""
    s_cmp_ge_u32 s2, 216
    s_cbranch_scc1 L_hh_noth1
    s_waitcnt vmcnt(2) lgkmcnt(0)
""")
tile_gemv(48, TH, "s73", Y, PH, C_G2, f"""
    s_mul_i32 s9, s2, 43691
    s_lshr_b32 s9, s9, 17                 ; cg
    s_mul_i32 s10, s9, 3
    s_sub_u32 s10, s2, s10                ; kq'
    s_mul_i32 s11, s10, 18432
    s_lshl_b32 s12, s9, 8
    s_add_u32 s11, s11, s12
    s_add_u32 s11, s11, {HP_OFF}""")
P("L_hh_noth1:")
STAMP(2)
P("    s_mov_b64 exec, s[70:71]")
for i in range(9):
    if i >= HPACE:
        P(f"    s_waitcnt vmcnt({HPACE-1})")
    P(f"    buffer_load_dwordx4 v[{TMR+4*i}:{TMR+4*i+3}], v2, s[52:55], s74 offen nt\n    s_add_u32 s74, s74, 1152")
P("    s_mov_b64 exec, -1")
STAMP(3)
lp = L("hhpoll"); ld = L("hhdone")
srd(56, 30, 9216)
P(f"""
    s_cmp_eq_u32 s8, 0
    s_cbranch_scc0 L_hh_nopoll
    s_mul_i32 s11, s6, 144
    s_add_u32 s11, s11, {HP_OFF}
    v_lshrrev_b32 v4, 4, v0
    s_mov_b32 s14, 18432
    v_mul_lo_u32 v4, v4, s14
    v_and_b32 v5, 15, v0
    v_lshl_add_u32 v4, v5, 4, v4
    v_lshlrev_b32 v6, 3, v5
    s_mul_i32 s13, s6, 72
    v_mov_b32 v32, 0
    v_mov_b32 v33, 0
    v_mov_b32 v34, 0
    v_mov_b32 v35, 0
    {EX(0x1ff)}
    buffer_load_dwordx2 v[44:45], v6, s[56:59], s13 offen
    {EX(0x01ff01ff01ff)}
    s_mov_b32 s79, {SPIN}
{lp}:
    buffer_load_dwordx4 v[32:35], v4, s[44:47], s11 offen sc1
    s_waitcnt vmcnt(0)""")
check([32], 40, ld)
polltail(lp, 8)
P(f"{ld}:\n    s_mov_b64 exec, -1")
untag4(32)
allreduce_rows4(32, 36)
bf16r2(32, 33, 40); bf16r2(34, 35, 40)
unpack4(44, 36)
for k in range(4):
    P(f"    v_add_f32 v{32+k}, v{32+k}, v{36+k}")
bf16r2(32, 33, 40); bf16r2(34, 35, 40)
P("    s_mov_b32 s12, 0x3d372713             ; 0.044715\n    s_mov_b32 s13, 0x40135761             ; 2*0.7978845608*log2(e)")
for k in range(4):
    x, t = 32 + k, 36 + k
    P(f"""
    v_mul_f32 v{t}, v{x}, v{x}
    v_mul_f32 v{t}, v{t}, v{x}
    v_fma_f32 v{t}, v{t}, s12, v{x}
    v_mul_f32 v{t}, s13, v{t}
    v_exp_f32 v{t}, v{t}
    s_nop 0
    v_add_f32 v{t}, 1.0, v{t}
    v_rcp_f32 v{t}, v{t}
    s_nop 0
    v_fma_f32 v{x}, -v{t}, v{x}, v{x}""")
bf16r2(32, 33, 40); bf16r2(34, 35, 40)
P(f"""
    v_lshlrev_b32 v5, 4, v5
    {EX(0x1ff)}
    ds_write_b128 v5, v[32:35] offset:{HL}
    s_mov_b64 exec, -1
""")
cnt_add(C_H, 3, 4)
P("L_hh_nopoll:")
cnt_wait(C_H, 1, 3)
STAMP(4)
P(f"""
    s_mul_i32 s12, s8, 36
    v_mov_b32 v3, s12
""")
for i in range(9):
    P(f"    ds_read_b32 v{32+i}, v3 offset:{HL+4*i}")
for k in range(8):
    P(f"    v_mov_b32 v{16+k}, 0")
P("    s_waitcnt vmcnt(0) lgkmcnt(0)")
for i in range(9):
    unpack4(TMR + 4 * i, 72); unpack4(TMR + 4 * i + 2, 76)
    for k in range(8):
        P(f"    v_fmac_f32 v{16+k}, v{32+i}, v{72+k}")
P(f"""
    s_mul_i32 s12, s8, 1280
    v_lshlrev_b32 v3, 5, v0
    v_add_u32 v3, s12, v3
    s_mov_b64 exec, s[70:71]
    ds_write_b128 v3, v[16:19] offset:{PBP}
    ds_write_b128 v3, v[20:23] offset:{PBP+16}
    s_mov_b64 exec, -1
""")
cnt_add(C_G3, 3, 4)
P("    s_cmp_eq_u32 s8, 1\n    s_cbranch_scc0 L_hh_nob")
cnt_wait(C_G3, 4, 3, sleep=0)
P("    v_lshlrev_b32 v3, 5, v0\n    s_mov_b64 exec, s[70:71]")
for w in range(4):
    P(f"    ds_read_b128 v[{32+8*w}:{35+8*w}], v3 offset:{PBP+1280*w}\n    ds_read_b128 v[{36+8*w}:{39+8*w}], v3 offset:{PBP+1280*w+16}")
P("    s_waitcnt lgkmcnt(0)")
for k in range(8):
    P(f"    v_add_f32 v{32+k}, v{32+k}, v{40+k}\n    v_add_f32 v{48+k}, v{48+k}, v{56+k}")
for k in range(8):
    P(f"    v_add_f32 v{32+k}, v{32+k}, v{48+k}")
tag4(32); tag4(36)
P(f"""
    s_mul_i32 s11, s6, 2304
    s_lshl_b32 s12, s72, 1                ; ch*1280
    s_add_u32 s11, s11, s12
    s_add_u32 s11, s11, {FPB_OFF}
    buffer_store_dwordx4 v[32:35], v3, s[44:47], s11 offen sc1
    buffer_store_dwordx4 v[36:39], v3, s[44:47], s11 offen offset:16 sc1
    s_mov_b64 exec, -1
L_hh_nob:
""")
STAMP(5)
P("    s_branch L_prefinal")

KR, VR, Q0, Q1, X, A0, A1 = 8, 40, 72, 76, 80, 96, 104
P("L_stream:")
srd(48, 18, 0x10000000)
srd(52, 20, 0x10000000)
to_loads()
P(f"""
    s_sub_u32 s15, s3, 8                  ; w
    s_lshl_b32 s8, s4, 24
    s_lshl_b32 s9, s5, 16
    s_add_u32 s8, s8, s9
    s_add_u32 s8, s8, 0xF00000
    s_lshl_b32 s9, s15, 13
    s_add_u32 s8, s8, s9
    s_add_u32 s9, s8, 4096
""")
def kvload(srdn, base, i):
    so = "s8" if i < 4 else "s9"
    P(f"    buffer_load_dwordx4 v[{base+4*i}:{base+4*i+3}], v2, s[{srdn}:{srdn+3}], {so} offen offset:{(i%4)*1024} nt")
seq = [(48, KR, i) for i in range(8)] + [(52, VR, i) for i in range(8)]
kvload(*seq[0])
P("""
    s_waitcnt lgkmcnt(0)
    s_barrier                             ; B0
""")
tags_ready()
nxt = [1]
def issue_next():
    n = nxt[0]
    if n >= 16: return
    P(f"    s_waitcnt vmcnt({(PACE if n < 8 + PRE else PACE2)-1})")
    kvload(*seq[n])
    nxt[0] += 1
while nxt[0] < 8 + PRE:
    issue_next()
STAMP(1)
cnt_wait(C_Q, 4, 3)
STAMP(2)
P(f"""
    v_and_b32 v3, 15, v0
    v_lshlrev_b32 v3, 4, v3
    ds_read_b128 v[{Q0}:{Q0+3}], v3 offset:{QL}
    ds_read_b128 v[{Q1}:{Q1+3}], v3 offset:{QL+256}
    s_waitcnt vmcnt({PRE}) lgkmcnt(0)
""")
for i in range(8):
    k = KR + 4 * i
    P(f"""
    v_dot2_f32_bf16 v{X+i}, v{k}, v{Q0}, 0
    v_dot2_f32_bf16 v{X+8+i}, v{k}, v{Q1}, 0
    v_dot2_f32_bf16 v{X+i}, v{k+1}, v{Q0+1}, v{X+i}
    v_dot2_f32_bf16 v{X+8+i}, v{k+1}, v{Q1+1}, v{X+8+i}
    v_dot2_f32_bf16 v{X+i}, v{k+2}, v{Q0+2}, v{X+i}
    v_dot2_f32_bf16 v{X+8+i}, v{k+2}, v{Q1+2}, v{X+8+i}
    v_dot2_f32_bf16 v{X+i}, v{k+3}, v{Q0+3}, v{X+i}
    v_dot2_f32_bf16 v{X+8+i}, v{k+3}, v{Q1+3}, v{X+8+i}""")
    if i % 2 == 1:
        issue_next()
P("    s_nop 3")
for v in range(8):
    P(f"    v_add_f32_dpp v{X+v}, v{X+v}, v{X+v} row_ror:8 row_mask:0xf bank_mask:0xf")
    P(f"    v_add_f32_dpp v{X+v}, v{X+v+8}, v{X+v+8} row_ror:8 row_mask:0xf bank_mask:0xc")
for v in range(4):
    P(f"    v_add_f32_dpp v{X+v}, v{X+v}, v{X+v} row_half_mirror row_mask:0xf bank_mask:0xf")
    P(f"    v_add_f32_dpp v{X+v}, v{X+v+4}, v{X+v+4} row_half_mirror row_mask:0xf bank_mask:0xa")
P(f"""
    s_mov_b32 s12, 0xcccccccc
    s_mov_b32 s13, 0xcccccccc
    s_mov_b32 s10, 0xaaaaaaaa
    s_mov_b32 s11, 0xaaaaaaaa
    v_add_f32_dpp v{X+8}, v{X}, v{X} quad_perm:[2,3,0,1] row_mask:0xf bank_mask:0xf
    v_add_f32_dpp v{X+9}, v{X+2}, v{X+2} quad_perm:[2,3,0,1] row_mask:0xf bank_mask:0xf
    v_add_f32_dpp v{X+10}, v{X+1}, v{X+1} quad_perm:[2,3,0,1] row_mask:0xf bank_mask:0xf
    v_add_f32_dpp v{X+11}, v{X+3}, v{X+3} quad_perm:[2,3,0,1] row_mask:0xf bank_mask:0xf
    v_cndmask_b32 v{X}, v{X+8}, v{X+9}, s[12:13]
    v_cndmask_b32 v{X+1}, v{X+10}, v{X+11}, s[12:13]
    s_nop 1
    v_add_f32_dpp v{X+8}, v{X}, v{X} quad_perm:[1,0,3,2] row_mask:0xf bank_mask:0xf
    v_add_f32_dpp v{X+9}, v{X+1}, v{X+1} quad_perm:[1,0,3,2] row_mask:0xf bank_mask:0xf
    v_cndmask_b32 v{X}, v{X+8}, v{X+9}, s[10:11]
""")
while nxt[0] < 16:
    issue_next()
R = X
bf16r1(R)
P(f"    s_mov_b32 s10, 0x3db504f3          ; 128^-0.5\n    v_mul_f32 v{R}, s10, v{R}")
bf16r1(R)
def head_allreduce(op, v, t):
    P(f"""
    s_nop 1
    {op}_dpp v{v}, v{v}, v{v} quad_perm:[1,0,3,2] row_mask:0xf bank_mask:0xf
    s_nop 1
    {op}_dpp v{v}, v{v}, v{v} quad_perm:[2,3,0,1] row_mask:0xf bank_mask:0xf
    s_nop 1
    {op}_dpp v{v}, v{v}, v{v} row_half_mirror row_mask:0xf bank_mask:0xf
    v_mov_b32 v{t}, v{v}
    s_nop 1
    v_permlane16_swap_b32 v{v}, v{t}
    {op} v{v}, v{v}, v{t}
    v_mov_b32 v{t}, v{v}
    s_nop 1
    v_permlane32_swap_b32 v{v}, v{t}
    {op} v{v}, v{v}, v{t}""")
P(f"    v_mov_b32 v4, v{R}")
head_allreduce("v_max_f32", 4, 5)
P(f"""
    v_and_b32 v6, 8, v0
    v_lshlrev_b32 v6, 2, v6               ; head*32
    s_lshl_b32 s11, s15, 2
    v_add_u32 v3, s11, v6
    {EX(0x101)}
    ds_write_b32 v3, v4 offset:{WM}
    s_mov_b64 exec, -1
""")
cnt_add(C_M, 3, 5)
cnt_wait(C_M, 8, 3, sleep=0)
P(f"""
    ds_read_b128 v[112:115], v6 offset:{WM}
    ds_read_b128 v[116:119], v6 offset:{WM+16}
    s_waitcnt lgkmcnt(0)
    v_max3_f32 v4, v112, v113, v114
    v_max3_f32 v4, v4, v115, v116
    v_max3_f32 v4, v4, v117, v118
    v_max_f32 v4, v4, v119
    s_mov_b32 s10, 0x3fb8aa3b          ; log2(e)
    v_sub_f32 v{R}, v{R}, v4
    v_mul_f32 v{R}, s10, v{R}
    v_exp_f32 v{R}, v{R}
    s_nop 0
    v_mov_b32 v4, v{R}
""")
head_allreduce("v_add_f32", 4, 5)
P(f"""
    v_add_u32 v3, s11, v6
    {EX(0x101)}
    ds_write_b32 v3, v4 offset:{WL}
    s_mov_b64 exec, -1
""")
for k in range(16):
    P(f"    v_mov_b32_dpp v{KR+2*k}, v{R} row_newbcast:{k} row_mask:0xf bank_mask:0xf")
for j in range(16):
    P(f"    v_mov_b32 v{A0+j}, 0")
for i in range(8):
    P(f"    s_waitcnt vmcnt({7-i})")
    unpack4(VR + 4 * i, 112)
    unpack4(VR + 4 * i + 2, 116)
    for j in range(4):
        P(f"    v_pk_fma_f32 v[{A0+2*j}:{A0+2*j+1}], v[{112+2*j}:{113+2*j}], v[{KR+2*i}:{KR+2*i+1}], v[{A0+2*j}:{A0+2*j+1}] op_sel_hi:[1,0,1]")
        P(f"    v_pk_fma_f32 v[{A1+2*j}:{A1+2*j+1}], v[{112+2*j}:{113+2*j}], v[{KR+16+2*i}:{KR+16+2*i+1}], v[{A1+2*j}:{A1+2*j+1}] op_sel_hi:[1,0,1]")
STAMP(3)
P("    s_nop 1")
for j in range(8):
    P(f"    v_permlane32_swap_b32 v{A0+j}, v{A1+j}")
for j in range(8):
    P(f"    v_add_f32 v{A0+j}, v{A0+j}, v{A1+j}")
P("    s_nop 1")
for j in range(4):
    P(f"    v_permlane16_swap_b32 v{A0+j}, v{A0+4+j}")
for j in range(4):
    P(f"    v_add_f32 v{A0+j}, v{A0+j}, v{A0+4+j}")
P(f"""
    v_lshrrev_b32 v3, 5, v0
    v_lshlrev_b32 v3, 9, v3
    v_and_b32 v4, 15, v0
    v_lshl_add_u32 v3, v4, 5, v3
    v_and_b32 v4, 16, v0
    v_add_u32 v3, v3, v4
    s_lshl_b32 s11, s15, 10
    v_add_u32 v3, s11, v3
    ds_write_b128 v3, v[{A0}:{A0+3}] offset:{PV}
""")
cnt_add(C_PV, 3, 4)
P(f"""
    s_cmp_lg_u32 s15, 0
    s_cbranch_scc1 L_prefinal
""")
cnt_wait(C_PV, 8, 3, sleep=0)
for w in range(8):
    P(f"    ds_read_b128 v[{8+4*w}:{11+4*w}], v2 offset:{PV+1024*w}")
P(f"""
    v_lshrrev_b32 v4, 5, v0
    v_lshlrev_b32 v4, 5, v4               ; head*32
    ds_read_b128 v[48:51], v4 offset:{WL}
    ds_read_b128 v[52:55], v4 offset:{WL+16}
    ds_read_b128 v[56:59], v4 offset:{WM}
    ds_read_b128 v[60:63], v4 offset:{WM+16}
    v_lshrrev_b32 v5, 3, v0
    v_lshlrev_b32 v5, 11, v5
    v_and_b32 v6, 7, v0
    v_lshl_add_u32 v5, v6, 4, v5
    s_lshl_b32 s12, s4, 14
    s_lshl_b32 s13, s5, 7
    s_add_u32 s12, s12, s13
    s_add_u32 s12, s12, {OPD_OFF}
    s_waitcnt lgkmcnt(4)
""")
for k in range(4):
    P(f"    v_add_f32 v{8+k}, v{8+k}, v{12+k}\n    v_add_f32 v{16+k}, v{16+k}, v{20+k}\n    v_add_f32 v{24+k}, v{24+k}, v{28+k}\n    v_add_f32 v{32+k}, v{32+k}, v{36+k}")
for k in range(4):
    P(f"    v_add_f32 v{8+k}, v{8+k}, v{16+k}\n    v_add_f32 v{24+k}, v{24+k}, v{32+k}")
for k in range(4):
    P(f"    v_add_f32 v{8+k}, v{8+k}, v{24+k}")
tag4(8)
P(f"""
    buffer_store_dwordx4 v[8:11], v5, s[44:47], s12 offen sc1
    s_waitcnt lgkmcnt(0)
    v_add_f32 v13, v48, v49
    v_add_f32 v14, v50, v51
    v_add_f32 v15, v52, v53
    v_add_f32 v13, v13, v14
    v_add_f32 v14, v54, v55
    v_add_f32 v13, v13, v15
    v_add_f32 v13, v13, v14
    v_max3_f32 v12, v56, v57, v58
    v_max3_f32 v12, v12, v59, v60
    v_max3_f32 v12, v12, v61, v62
    v_max_f32 v12, v12, v63
    v_mov_b32 v14, 0
    v_mov_b32 v15, 0
""")
tag4(12)
P(f"""
    v_lshlrev_b32 v4, 3, v4               ; head*256
    s_lshl_b32 s12, s4, 9
    s_lshl_b32 s13, s5, 4
    s_add_u32 s12, s12, s13
    s_add_u32 s12, s12, {OPM_OFF}
    {EX(0x100000001)}
    buffer_store_dwordx4 v[12:15], v4, s[44:47], s12 offen sc1
    s_mov_b64 exec, -1
""")
STAMP(4)
lp = L("h2poll"); ld = L("h2done")
P(f"""
    s_lshl_b32 s12, s6, 11
    s_add_u32 s12, s12, {OPD_OFF}
    s_lshr_b32 s13, s6, 2
    s_lshl_b32 s13, s13, 8
    s_add_u32 s13, s13, {OPM_OFF}
    v_lshrrev_b32 v3, 3, v0
    v_lshlrev_b32 v3, 4, v3               ; s_sub*16
    s_mov_b32 s79, {SPIN}
{lp}:
    buffer_load_dwordx4 v[16:19], v2, s[44:47], s12 offen sc1
    buffer_load_dwordx4 v[20:23], v2, s[44:47], s12 offen offset:1024 sc1
    buffer_load_dwordx4 v[24:27], v3, s[44:47], s13 offen sc1
    buffer_load_dwordx4 v[28:31], v3, s[44:47], s13 offen offset:128 sc1
    s_waitcnt vmcnt(0)""")
check([16, 20, 24, 28], 32, ld)
polltail(lp, 0)
P(f"{ld}:")
STAMP(5)
untag4(16); untag4(20)
P(f"""
    v_and_b32 v24, v1, v24
    v_and_b32 v25, v1, v25
    v_and_b32 v28, v1, v28
    v_and_b32 v29, v1, v29
    v_max_f32 v32, v24, v28
    s_nop 1
    v_max_f32_dpp v32, v32, v32 row_ror:8 row_mask:0xf bank_mask:0xf
    v_mov_b32 v33, v32
    s_nop 1
    v_permlane16_swap_b32 v32, v33
    v_max_f32 v32, v32, v33
    v_mov_b32 v33, v32
    s_nop 1
    v_permlane32_swap_b32 v32, v33
    v_max_f32 v32, v32, v33               ; global M
    s_mov_b32 s10, 0x3fb8aa3b
    v_sub_f32 v24, v24, v32
    v_sub_f32 v28, v28, v32
    v_mul_f32 v24, s10, v24
    v_mul_f32 v28, s10, v28
    v_exp_f32 v24, v24
    v_exp_f32 v28, v28
    s_nop 0
    v_mul_f32 v34, v24, v25
    v_fmac_f32 v34, v28, v29              ; L part
""")
for k in range(4):
    P(f"    v_mul_f32 v{16+k}, v24, v{16+k}\n    v_fmac_f32 v{16+k}, v28, v{20+k}")
P("    s_nop 1")
for v in (16, 17, 18, 19, 34):
    P(f"    v_add_f32_dpp v{v}, v{v}, v{v} row_ror:8 row_mask:0xf bank_mask:0xf")
for v, t in ((16, 20), (17, 21), (18, 22), (19, 23), (34, 35)):
    P(f"    v_mov_b32 v{t}, v{v}")
P("    s_nop 1")
for v, t in ((16, 20), (17, 21), (18, 22), (19, 23), (34, 35)):
    P(f"    v_permlane16_swap_b32 v{v}, v{t}")
for v, t in ((16, 20), (17, 21), (18, 22), (19, 23), (34, 35)):
    P(f"    v_add_f32 v{v}, v{v}, v{t}")
for v, t in ((16, 20), (17, 21), (18, 22), (19, 23), (34, 35)):
    P(f"    v_mov_b32 v{t}, v{v}")
P("    s_nop 1")
for v, t in ((16, 20), (17, 21), (18, 22), (19, 23), (34, 35)):
    P(f"    v_permlane32_swap_b32 v{v}, v{t}")
for v, t in ((16, 20), (17, 21), (18, 22), (19, 23), (34, 35)):
    P(f"    v_add_f32 v{v}, v{v}, v{t}")
P("    v_rcp_f32 v35, v34\n    s_nop 0")
for k in range(4):
    P(f"""
    v_mul_f32 v20, v{16+k}, v35
    v_fma_f32 v21, -v20, v34, v{16+k}
    v_fma_f32 v{16+k}, v21, v35, v20""")
bf16r2(16, 17, 20); bf16r2(18, 19, 20)
P(f"""
    {EX(0xff)}
    ds_write_b128 v2, v[16:19] offset:{OL}
    s_mov_b64 exec, -1
""")
P(f"""
L_prefinal:
    s_waitcnt vmcnt(0) lgkmcnt(0)
    s_barrier                             ; B_b
    s_lshl_b32 s11, s3, 3
    v_mov_b32 v3, s11
    ds_read_b64 v[4:5], v3 offset:{OL}
""")
unpack4(TOR, 8); unpack4(TOR + 2, 12); unpack4(TOR + 4, 16); unpack4(TOR + 6, 20)
P("    s_waitcnt lgkmcnt(0)")
for k in range(8):
    P(f"    v_mul_f32 v{8+k}, v4, v{8+k}\n    v_fmac_f32 v{8+k}, v5, v{16+k}")
P(f"""
    s_mul_i32 s11, s3, 1280
    v_lshlrev_b32 v3, 5, v0
    v_add_u32 v3, s11, v3
    s_mov_b64 exec, s[70:71]
    ds_write_b128 v3, v[8:11] offset:{PA}
    ds_write_b128 v3, v[12:15] offset:{PA+16}
    s_mov_b64 exec, -1
    s_waitcnt lgkmcnt(0)
    s_barrier                             ; B_c
    s_cmp_ge_u32 s3, 5
    s_cbranch_scc1 L_f_nos2
    s_cmp_eq_u32 s3, 4
    s_cselect_b32 s12, s7, 0
    s_cmp_lg_u32 s12, 0
    s_cbranch_scc1 L_f_nos2
    s_lshl_b32 s11, s3, 6
    v_add_u32 v3, s11, v0                 ; t
    v_lshrrev_b32 v4, 2, v3               ; quad
    v_and_b32 v5, 3, v3
    v_mul_u32_u24 v5, {4*1280}, v5
    v_lshl_add_u32 v5, v4, 4, v5
    ds_read_b128 v[8:11], v5 offset:{PA}
    ds_read_b128 v[12:15], v5 offset:{PA+1280}
    ds_read_b128 v[16:19], v5 offset:{PA+2560}
    ds_read_b128 v[20:23], v5 offset:{PA+3840}
    s_waitcnt lgkmcnt(0)
""")
for k in range(4):
    P(f"    v_add_f32 v{8+k}, v{8+k}, v{12+k}\n    v_add_f32 v{16+k}, v{16+k}, v{20+k}")
for k in range(4):
    P(f"    v_add_f32 v{8+k}, v{8+k}, v{16+k}")
P("    s_nop 0")
for k in range(4):
    P(f"    v_add_f32_dpp v{8+k}, v{8+k}, v{8+k} quad_perm:[1,0,3,2] row_mask:0xf bank_mask:0xf")
for k in range(4):
    P(f"    v_add_f32_dpp v{8+k}, v{8+k}, v{8+k} quad_perm:[2,3,0,1] row_mask:0xf bank_mask:0xf")
tag4(8)
P(f"""
    v_lshlrev_b32 v4, 4, v4               ; quad*16
    s_mul_i32 s11, s6, 2304
    s_lshl_b32 s12, s72, 1
    s_add_u32 s11, s11, s12
    s_add_u32 s11, s11, {FPA_OFF}
    s_mov_b32 s14, 0x11111111
    s_mov_b32 s15, 0x11111111
    s_mov_b64 exec, s[14:15]
    buffer_store_dwordx4 v[8:11], v4, s[44:47], s11 offen sc1
    s_mov_b64 exec, -1
L_f_nos2:
""")
STAMP(6)
P(f"""
    s_cmp_lt_u32 s2, {RED0}
    s_cbranch_scc1 L_done
    s_sub_u32 s8, s2, {RED0}              ; k: columns 32k..32k+31
    v_lshrrev_b32 v3, 3, v0
    s_mov_b32 s14, 2304
    v_mul_lo_u32 v3, v3, s14
    v_and_b32 v4, 7, v0
    v_lshl_add_u32 v3, v4, 4, v3
    s_mul_i32 s11, s3, {8*2304}
    s_lshl_b32 s12, s8, 7
    s_add_u32 s11, s11, s12
    s_add_u32 s12, s11, {FPB_OFF}
    s_add_u32 s11, s11, {FPA_OFF}
""")
srd(48, 16, 1152)
srd(52, 34, 1152)
srd(56, 36, 1152)
lp = L("h3poll"); ld = L("h3done")
P(f"""
    s_lshl_b32 s13, s8, 6
    v_lshlrev_b32 v6, 1, v0
    buffer_load_ushort v40, v6, s[48:51], s13 offen
    buffer_load_ushort v41, v6, s[52:55], s13 offen
    s_mov_b32 s79, {SPIN}
{lp}:
    buffer_load_dwordx4 v[8:11], v3, s[44:47], s11 offen sc1
    buffer_load_dwordx4 v[12:15], v3, s[44:47], s12 offen sc1
    s_waitcnt vmcnt(0)""")
check([8, 12], 16, ld)
polltail(lp, 0)
P(f"{ld}:")
untag4(8); untag4(12)
P(f"""
    s_nop 0
    v_permlane32_swap_b32 v8, v9
    v_permlane32_swap_b32 v10, v11
    v_permlane32_swap_b32 v12, v13
    v_permlane32_swap_b32 v14, v15
    v_add_f32 v8, v8, v9
    v_add_f32 v10, v10, v11
    v_add_f32 v12, v12, v13
    v_add_f32 v14, v14, v15
    s_nop 1
    v_permlane16_swap_b32 v8, v10
    v_permlane16_swap_b32 v12, v14
    v_add_f32 v8, v8, v10
    v_add_f32 v12, v12, v14
    s_nop 1
    v_add_f32_dpp v8, v8, v8 row_ror:8 row_mask:0xf bank_mask:0xf
    v_add_f32_dpp v12, v12, v12 row_ror:8 row_mask:0xf bank_mask:0xf
    v_lshrrev_b32 v5, 4, v0
    v_and_b32 v6, 1, v5
    v_lshrrev_b32 v5, 1, v5
    v_lshl_add_u32 v5, v6, 1, v5
    v_lshl_add_u32 v5, v4, 2, v5          ; column 0..31
    v_lshlrev_b32 v5, 2, v5
    s_lshl_b32 s14, s3, 7
    v_add_u32 v5, s14, v5
    s_mov_b32 s14, 0x00ff00ff
    s_mov_b32 s15, 0x00ff00ff
    s_mov_b64 exec, s[14:15]
    ds_write_b32 v5, v8 offset:{RA}
    ds_write_b32 v5, v12 offset:{RB}
    s_mov_b64 exec, -1
    s_waitcnt lgkmcnt(0)
    s_barrier
    s_cmp_lg_u32 s3, 0
    s_cbranch_scc1 L_done
    v_lshlrev_b32 v3, 2, v0
    v_and_b32 v3, 0x7f, v3
""")
for w in range(16):
    P(f"    ds_read_b32 v{8+w}, v3 offset:{RA+128*w}\n    ds_read_b32 v{24+w}, v3 offset:{RB+128*w}")
P("    s_waitcnt lgkmcnt(0)")
for base in (8, 24):
    for k in range(8):
        P(f"    v_add_f32 v{base+k}, v{base+k}, v{base+8+k}")
    for k in range(4):
        P(f"    v_add_f32 v{base+k}, v{base+k}, v{base+4+k}")
    for k in range(2):
        P(f"    v_add_f32 v{base+k}, v{base+k}, v{base+2+k}")
    P(f"    v_add_f32 v{base}, v{base}, v{base+1}")
bf16r2(8, 24, 4)
P("""
    v_lshlrev_b32 v40, 16, v40
    v_lshlrev_b32 v41, 16, v41
    v_add_f32 v8, v40, v8
    v_add_f32 v24, v24, v41
""")
bf16r2(8, 24, 4)
P(f"""
    v_add_f32 v8, v8, v24
    v_cvt_pk_bf16_f32 v8, v8, v8
    v_lshlrev_b32 v6, 1, v0
    {EX(0xffffffff)}
    buffer_store_short v8, v6, s[56:59], s13 offen
    s_mov_b64 exec, -1
    s_cmp_lg_u32 s8, 0
    s_cbranch_scc1 L_done
    v_mov_b32 v32, s42
    v_mov_b32 v34, 0
    s_mov_b64 exec, 1
    buffer_store_dword v32, v34, s[44:47], 0 offen
    s_mov_b64 exec, -1
L_done:
""")
STAMP(7)
if STAMPS:
    P(f"""
    s_waitcnt lgkmcnt(0)
    s_lshl_b32 s11, s2, 4
    s_add_u32 s11, s11, s3
    s_lshl_b32 s11, s11, 6
    s_add_u32 s11, s11, {STAMP_OFF}
    v_mov_b32 v3, 0
    s_mov_b64 exec, 1
""")
    for q in range(4):
        for k in range(4):
            P(f"    v_mov_b32 v{32+k}, s{84+4*q+k}")
        P(f"    buffer_store_dwordx4 v[32:35], v3, s[44:47], s11 offen offset:{16*q}\n    s_nop 1")
    P("    s_mov_b64 exec, -1")
P(f"""
L_end:
    s_endpgm
.section .rodata,"a"
.p2align 6
.amdhsa_kernel {NAME}_kernel
  .amdhsa_next_free_vgpr 128
  .amdhsa_next_free_sgpr 102
  .amdhsa_accum_offset 128
  .amdhsa_group_segment_fixed_size 0
  .amdhsa_kernarg_size 104
  .amdhsa_user_sgpr_count 2
  .amdhsa_user_sgpr_kernarg_segment_ptr 1
  .amdhsa_system_sgpr_workgroup_id_x 1
.end_amdhsa_kernel""")
print("\n".join(out))
```

```python
import sys
NAME = "parallel_sum__sliding_block_cached__mixer_channel_mlp__decode"
STAMPS = "--stamps" in sys.argv
NOPOLL = "--nopoll" in sys.argv
PACE = 3; PACE2 = None; HPACE = 3; PRE = 3; SPRE = 0; NB = 3; MID = 0; PIPEH1 = 1; VT = 15; LAZY = 1
for a in sys.argv[1:]:
    if a.startswith("--pace="): PACE = int(a.split("=")[1])
    if a.startswith("--pace2="): PACE2 = int(a.split("=")[1])
    if a.startswith("--hpace="): HPACE = int(a.split("=")[1])
    if a.startswith("--pre="): PRE = int(a.split("=")[1])
    if a.startswith("--spre="): SPRE = int(a.split("=")[1])
    if a.startswith("--nb="): NB = int(a.split("=")[1])
    if a.startswith("--mid="): MID = int(a.split("=")[1])
    if a.startswith("--vt="): VT = int(a.split("=")[1])
    if a.startswith("--lazy="): LAZY = int(a.split("=")[1])
if PACE2 is None: PACE2 = PACE
SPIN = "1" if NOPOLL else "0x40000"

QP_OFF, HP_OFF, OPD_OFF, OPM_OFF, FPA_OFF, FPB_OFF, STAMP_OFF = 0x1000, 0x12000, 0x20000, 0x60000, 0x64000, 0xB0000, 0x200000
C_G1, C_Q, C_M, C_G2, C_PV, C_G3, C_H, C_L, C_VI, C_KI, C_O, C_PA, C_RA, C_RB = 0, 4, 8, 16, 20, 24, 28, 32, 36, 40, 44, 48, 52, 56
XN, Y, QL, WM, WL, HL, OL, PV = 0x100, 0xB00, 0x1500, 0x1700, 0x1740, 0x1800, 0x1900, 0x2000
PQ, PH, PBP, PA, RA, RB = 0x4000, 0x5000, 0x6000, 0x8000, 0xD000, 0xD800
TQ, TH = 0xE000, 0x12800
LDS_BYTES = 0x18800
RED0 = 238
TOR = 80

out = []
def P(s=""):
    for line in s.strip("\n").split("\n"):
        out.append(line)
uid = [0]
def L(base):
    uid[0] += 1
    return f"L_{base}_{uid[0]}"
def STAMP(idx):
    if STAMPS:
        P(f"    s_memrealtime s[{84+2*idx}:{85+2*idx}]")
def srd(d, ptr, nbytes):
    P(f"""
    s_mov_b32 s{d}, s{ptr}
    s_and_b32 s{d+1}, s{ptr+1}, 0xffff
    s_mov_b32 s{d+2}, {nbytes}
    s_mov_b32 s{d+3}, 0x00020000""")
def EX(mask):
    return f"s_mov_b32 exec_lo, {hex(mask & 0xffffffff)}\n    s_mov_b32 exec_hi, {hex(mask >> 32)}"
def rowreduce(op, v):
    for ror in (8, 4, 2, 1):
        P(f"    s_nop 1\n    {op}_dpp v{v}, v{v}, v{v} row_ror:{ror} row_mask:0xf bank_mask:0xf")
def crossrow(op, v):
    P(f"""
    s_nop 0
    v_readlane_b32 s80, v{v}, 0
    v_readlane_b32 s81, v{v}, 16
    v_readlane_b32 s82, v{v}, 32
    v_readlane_b32 s83, v{v}, 48
    v_mov_b32 v{v}, s80
    {op} v{v}, s81, v{v}
    {op} v{v}, s82, v{v}
    {op} v{v}, s83, v{v}""")
def cnt_add(off, va, vb):
    P(f"""
    s_waitcnt lgkmcnt(0)
    v_mov_b32 v{va}, {off}
    v_mov_b32 v{vb}, 1
    s_mov_b64 exec, 1
    ds_add_u32 v{va}, v{vb}
    s_mov_b64 exec, -1""")
def cnt_wait(off, target, vt, sleep=1):
    l0, l1 = L("cw"), L("cwd")
    P(f"""
    s_mov_b32 s79, 0x40000
{l0}:
    v_mov_b32 v{vt}, {off}
    ds_read_b32 v{vt}, v{vt}
    s_waitcnt lgkmcnt(0)
    v_readfirstlane_b32 s78, v{vt}
    s_cmp_ge_u32 s78, {target}
    s_cbranch_scc1 {l1}
    {"s_sleep %d" % sleep if sleep else ""}
    s_sub_u32 s79, s79, 1
    s_cmp_lg_u32 s79, 0
    s_cbranch_scc1 {l0}
{l1}:""")
def bf16r2(a, b, t):
    P(f"""
    v_cvt_pk_bf16_f32 v{t}, v{a}, v{b}
    v_lshlrev_b32 v{a}, 16, v{t}
    v_and_b32 v{b}, 0xffff0000, v{t}""")
def bf16r1(a):
    P(f"""
    v_cvt_pk_bf16_f32 v{a}, v{a}, v{a}
    v_lshlrev_b32 v{a}, 16, v{a}""")
def unpack4(src, dst):
    P(f"""
    v_lshlrev_b32 v{dst}, 16, v{src}
    v_and_b32 v{dst+1}, 0xffff0000, v{src}
    v_lshlrev_b32 v{dst+2}, 16, v{src+1}
    v_and_b32 v{dst+3}, 0xffff0000, v{src+1}""")
def tag4(r):
    for k in range(4):
        P(f"    v_and_or_b32 v{r+k}, v{r+k}, v1, s{64+k}")
def untag4(r):
    for k in range(4):
        P(f"    v_and_b32 v{r+k}, v1, v{r+k}")
def check(regs, t, okl):
    first = True
    for r in regs:
        if first:
            P(f"""
    v_xor_b32 v{t}, s64, v{r}
    v_xor_b32 v{t+1}, s65, v{r+1}
    v_xor_b32 v{t+2}, s66, v{r+2}
    v_or3_b32 v{t}, v{t}, v{t+1}, v{t+2}
    v_xor_b32 v{t+1}, s67, v{r+3}
    v_or_b32 v{t}, v{t}, v{t+1}""")
            first = False
        else:
            P(f"""
    v_xor_b32 v{t+1}, s64, v{r}
    v_xor_b32 v{t+2}, s65, v{r+1}
    v_or3_b32 v{t}, v{t}, v{t+1}, v{t+2}
    v_xor_b32 v{t+1}, s66, v{r+2}
    v_xor_b32 v{t+2}, s67, v{r+3}
    v_or3_b32 v{t}, v{t}, v{t+1}, v{t+2}""")
    P(f"""
    v_and_b32 v{t}, 0xff, v{t}
    v_cmp_ne_u32 vcc, 0, v{t}
    s_nop 1
    s_cbranch_vccz {okl}""")
def polltail(lp, sleep):
    P(f"""
    {"s_sleep %d" % sleep if sleep else ""}
    s_sub_u32 s79, s79, 1
    s_cmp_lg_u32 s79, 0
    s_cbranch_scc1 {lp}""")
def pipe_poll(name, issue, ngran, bufs, dst, t):
    nb = len(bufs)
    lp = L(name); done = L(name + "d")
    oks = [L(name + "ok") for _ in bufs]
    P(f"    s_mov_b32 s79, {SPIN}")
    for b in bufs:
        issue(b)
        P("    s_sleep 2")
    P(f"{lp}:")
    for k, b in enumerate(bufs):
        P(f"    s_waitcnt vmcnt({(nb-1)*ngran})")
        check([b + 4 * g for g in range(ngran)], t, oks[k])
        issue(b)
    P(f"""
    s_sub_u32 s79, s79, 1
    s_cmp_lg_u32 s79, 0
    s_cbranch_scc1 {lp}""")
    for k, b in enumerate(bufs):
        P(f"{oks[k]}:")
        if b != dst:
            for r in range(4 * ngran):
                P(f"    v_mov_b32 v{dst+r}, v{b+r}")
        if k != nb - 1:
            P(f"    s_branch {done}")
    P(f"{done}:")
def allreduce_rows4(r, t):
    for k in range(4): P(f"    v_mov_b32 v{t+k}, v{r+k}")
    P("    s_nop 1")
    for k in range(4): P(f"    v_permlane16_swap_b32 v{r+k}, v{t+k}")
    for k in range(4): P(f"    v_add_f32 v{r+k}, v{r+k}, v{t+k}")
    for k in range(4): P(f"    v_mov_b32 v{t+k}, v{r+k}")
    P("    s_nop 1")
    for k in range(4): P(f"    v_permlane32_swap_b32 v{r+k}, v{t+k}")
    for k in range(4): P(f"    v_add_f32 v{r+k}, v{r+k}, v{t+k}")
E = 8
def layernorm(ldsoff):
    P(f"    v_add_f32 v4, v{E}, v{E+1}")
    for k in range(2, 10):
        P(f"    v_add_f32 v4, v4, v{E+k}")
    rowreduce("v_add_f32", 4); crossrow("v_add_f32", 4)
    P(f"    s_mov_b32 s10, 0x3ae38e39\n    v_mul_f32 v4, s10, v4      ; mean")
    P("    v_mov_b32 v5, 0")
    for k in range(10):
        P(f"    v_sub_f32 v6, v{E+k}, v4")
        if k >= 8:
            P("    v_mul_f32 v6, v6, v30")
        P("    v_fmac_f32 v5, v6, v6")
    rowreduce("v_add_f32", 5); crossrow("v_add_f32", 5)
    P("    v_mul_f32 v5, s10, v5      ; var")
    bf16r2(4, 5, 6)
    P("    v_add_f32 v5, 0x3727c5ac, v5")
    bf16r1(5)
    P("    v_sqrt_f32 v5, v5\n    s_nop 0")
    bf16r1(5)
    P("    v_rcp_f32 v7, v5\n    s_nop 0")
    for k in range(0, 10, 2):
        a, b = E + k, E + k + 1
        P(f"    v_sub_f32 v{a}, v{a}, v4\n    v_sub_f32 v{b}, v{b}, v4")
        bf16r2(a, b, 6)
        for t in (a, b):
            P(f"""
    v_mul_f32 v6, v{t}, v7
    v_fma_f32 v{t}, -v6, v5, v{t}
    v_fma_f32 v{t}, v{t}, v7, v6""")
        bf16r2(a, b, 6)
    P(f"    v_mul_f32 v{E+8}, v{E+8}, v30\n    v_mul_f32 v{E+9}, v{E+9}, v30")
    if ldsoff is not None:
        P(f"""
    v_lshlrev_b32 v6, 5, v0
    v_lshlrev_b32 v7, 3, v0
    ds_write_b128 v6, v[{E}:{E+3}] offset:{ldsoff}
    ds_write_b128 v6, v[{E+4}:{E+7}] offset:{ldsoff+16}
    ds_write_b64 v7, v[{E+8}:{E+9}] offset:{ldsoff+2048}""")
def tile_dma(srdn, stride_log_or_mul, nrows, ldsbase, stride):
    P(f"""
    v_lshrrev_b32 v4, 3, v0
    s_mov_b32 s14, {stride}
    v_mul_lo_u32 v4, v4, s14
    v_and_b32 v5, 7, v0
    v_lshl_add_u32 v4, v5, 4, v4
    s_mul_i32 s12, s8, {nrows*128}
    s_add_u32 s12, s12, {ldsbase}""")
    nl = (nrows + 7) // 8
    for i in range(nl):
        rem = nrows - 8 * i
        if rem < 8:
            P("    " + EX((1 << (8 * rem)) - 1))
        P(f"""
    s_mov_b32 m0, s12
    s_nop 0
    buffer_load_dwordx4 v4, s[{srdn}:{srdn+3}], s11 offen nt lds
    s_add_u32 s11, s11, {8*stride}
    s_add_u32 s12, s12, 1024""")
        if rem < 8:
            P("    s_mov_b64 exec, -1")
    return nl
def tile_gemv(nrows, ldsbase, multsreg, multoff, partoff, cntoff, pub_sexpr_code):
    n = nrows // 4
    P(f"""
    v_and_b32 v3, 15, v0
    v_lshrrev_b32 v4, 4, v0               ; ph
    s_mul_i32 s12, s8, {nrows*128}
    s_add_u32 s12, s12, {ldsbase}
    v_lshlrev_b32 v5, 7, v4
    v_lshl_add_u32 v5, v3, 3, v5
    v_add_u32 v5, s12, v5
    s_lshl_b32 s12, {multsreg}, 2
    v_lshl_add_u32 v6, v4, 2, s12
""")
    for i in range(n):
        P(f"    ds_read_b64 v[{32+2*i}:{33+2*i}], v5 offset:{512*i}\n    ds_read_b32 v{56+i}, v6 offset:{multoff+16*i}")
    P("    v_mov_b32 v20, 0\n    v_mov_b32 v21, 0\n    v_mov_b32 v22, 0\n    v_mov_b32 v23, 0")
    for i in range(n):
        P(f"    s_waitcnt lgkmcnt({min(15, 2*(n-1-i))})")
        unpack4(32 + 2 * i, 72)
        for k in range(4):
            P(f"    v_fmac_f32 v{20+k}, v{56+i}, v{72+k}")
    P(f"""
    s_lshl_b32 s12, s8, 10
    v_lshlrev_b32 v5, 8, v4
    v_lshl_add_u32 v5, v3, 4, v5
    v_add_u32 v5, s12, v5
    ds_write_b128 v5, v[20:23] offset:{partoff}
""")
    cnt_add(cntoff, 3, 4)
    skip = L("nos2")
    P(f"    s_cmp_eq_u32 s8, 0\n    s_cbranch_scc0 {skip}")
    cnt_wait(cntoff, 4, 3, sleep=0)
    P(f"""
    v_and_b32 v3, 15, v0
    v_lshlrev_b32 v3, 4, v3
    v_lshrrev_b32 v4, 4, v0
    v_lshl_add_u32 v3, v4, 10, v3
    ds_read_b128 v[20:23], v3 offset:{partoff}
    ds_read_b128 v[32:35], v3 offset:{partoff+256}
    ds_read_b128 v[36:39], v3 offset:{partoff+512}
    ds_read_b128 v[40:43], v3 offset:{partoff+768}
    s_waitcnt lgkmcnt(0)""")
    for k in range(4):
        P(f"    v_add_f32 v{20+k}, v{20+k}, v{32+k}\n    v_add_f32 v{36+k}, v{36+k}, v{40+k}")
    for k in range(4):
        P(f"    v_add_f32 v{20+k}, v{20+k}, v{36+k}")
    allreduce_rows4(20, 32)
    tag4(20)
    P(pub_sexpr_code)
    P(f"""
    {EX(0xffff)}
    buffer_store_dwordx4 v[20:23], v2, s[44:47], s11 offen sc1
    s_mov_b64 exec, -1
{skip}:""")
def tags_ready():
    P(f"""
    s_add_u32 s42, s42, 1
    s_and_b32 s64, s42, 0xff
    s_bfe_u32 s65, s42, 0x80008
    s_bfe_u32 s66, s42, 0x80010
    s_lshr_b32 s67, s42, 24""")
def xprep(nafter):
    P(f"""
    v_cmp_gt_u32 vcc, 32, v0
    v_mov_b32 v30, 0
    v_mov_b32 v31, 1.0
    s_nop 0
    v_cndmask_b32 v30, v30, v31, vcc
    s_waitcnt vmcnt({nafter})
""")
    STAMP(1)
    unpack4(24, E); unpack4(26, E + 4)
    P(f"    v_lshlrev_b32 v{E+8}, 16, v28\n    v_and_b32 v{E+9}, 0xffff0000, v28")
def to_loads():
    P(f"""
    s_lshr_b32 s11, s2, 1                 ; rg
    s_lshl_b32 s11, s11, 5
    s_lshl_b32 s12, s15, 2
    s_add_u32 s11, s11, s12
    s_mul_i32 s11, s11, 1152
    s_add_u32 s11, s11, s72               ; + ch*640
    s_mov_b64 exec, s[70:71]
    buffer_load_dwordx4 v[{TOR}:{TOR+3}], v2, s[60:63], s11 offen nt
    buffer_load_dwordx4 v[{TOR+4}:{TOR+7}], v2, s[60:63], s11 offen offset:1152 nt
    buffer_load_dwordx4 v[{TOR+8}:{TOR+11}], v2, s[60:63], s11 offen offset:2304 nt
    buffer_load_dwordx4 v[{TOR+12}:{TOR+15}], v2, s[60:63], s11 offen offset:3456 nt
    s_mov_b64 exec, -1""")

P(f"""; fused decode kernel: LN -> {{q-proj -> sliding-window GQA attention -> o-proj}} + {{LN -> MLP}} + residual
; @launch grid=(256,1,1) block=(1024,1,1) lds={LDS_BYTES}
.amdgcn_target "amdgcn-amd-amdhsa--gfx950"
.text
.globl {NAME}_kernel
.p2align 8
.type {NAME}_kernel,@function
{NAME}_kernel:
    s_cmp_ge_u32 s2, 256
    s_cbranch_scc1 L_end""")
STAMP(0)
P(f"""
    s_load_dwordx16 s[16:31], s[0:1], 0
    s_load_dwordx8 s[32:39], s[0:1], 64
    s_load_dwordx2 s[40:41], s[0:1], 96
    v_lshrrev_b32 v1, 6, v0
    v_and_b32 v0, 63, v0
    v_readfirstlane_b32 s3, v1
    v_lshlrev_b32 v2, 4, v0               ; lane*16
    v_mov_b32 v1, 0xffffff00
    s_lshr_b32 s4, s2, 4                  ; g
    s_and_b32 s5, s2, 15                  ; s
    s_lshr_b32 s6, s2, 1
    s_and_b32 s7, s2, 1                   ; ch
    s_mul_i32 s72, s7, 640
    s_mov_b32 s70, -1
    s_cmp_eq_u32 s7, 0
    s_cselect_b32 s71, 0xff, 0
    s_waitcnt lgkmcnt(0)
    s_load_dword s42, s[40:41], 0
""")
srd(44, 40, 0x40000000)
srd(60, 24, 4718592)
P("""
    s_cmp_ge_u32 s3, 8
    s_cbranch_scc1 L_stream
""")
srd(48, 16, 1152)
P(f"""
    s_and_b32 s8, s3, 3                   ; j
    v_lshlrev_b32 v3, 2, v0
    buffer_load_dwordx4 v[24:27], v2, s[48:51], 0 offen
    buffer_load_dword v28, v3, s[48:51], 0 offen offset:1024
    s_cmp_ge_u32 s3, 4
    s_cbranch_scc1 L_hh
""")
srd(52, 22, 4718592)
P(f"""
    s_lshr_b32 s9, s5, 2                  ; kq
    s_and_b32 s10, s5, 3                  ; cq
    s_mul_i32 s11, s9, 144
    s_mul_i32 s12, s8, 36
    s_add_u32 s73, s11, s12
    s_lshl_b32 s11, s73, 13               ; *8192
    s_lshl_b32 s12, s4, 9
    s_add_u32 s11, s11, s12
    s_lshl_b32 s12, s10, 7
    s_add_u32 s11, s11, s12
""")
nq = tile_dma(52, None, 36, TQ, 8192)
P(f"""
    s_cmp_lg_u32 s3, 0
    s_cbranch_scc1 L_h_noinit
    v_lshlrev_b32 v3, 2, v0
    v_mov_b32 v4, 0
    ds_write_b32 v3, v4
L_h_noinit:
    s_waitcnt lgkmcnt(0)
    s_barrier                             ; B0
""")
tags_ready()
xprep(nq)
layernorm(XN)
P("    s_waitcnt vmcnt(0) lgkmcnt(0)")
tile_gemv(36, TQ, "s73", XN, PQ, C_G1, f"""
    s_lshr_b32 s11, s5, 2
    s_lshl_b32 s11, s11, 14               ; kq*16384
    s_lshl_b32 s12, s4, 10                ; 256g*4
    s_add_u32 s11, s11, s12
    s_and_b32 s12, s5, 3
    s_lshl_b32 s12, s12, 8                ; 64cq*4
    s_add_u32 s11, s11, s12
    s_add_u32 s11, s11, {QP_OFF}""")
STAMP(2)
lp = L("h1poll"); ld = L("h1done")
P(f"""
    s_lshl_b32 s11, s4, 10
    s_lshl_b32 s12, s8, 8
    s_add_u32 s11, s11, s12
    s_add_u32 s11, s11, {QP_OFF}
    v_lshrrev_b32 v4, 4, v0
    v_lshlrev_b32 v4, 14, v4
    v_and_b32 v5, 15, v0
    v_lshl_add_u32 v4, v5, 4, v4
""")
if LAZY: cnt_wait(C_KI, 8, 3)
pipe_poll("h1p", lambda b: P(f"    buffer_load_dwordx4 v[{b}:{b+3}], v4, s[44:47], s11 offen sc1"), 1, [48 + 4 * i for i in range(NB)], 32, 40)
untag4(32)
allreduce_rows4(32, 36)
P(f"""
    v_cvt_pk_bf16_f32 v32, v32, v33
    v_cvt_pk_bf16_f32 v33, v34, v35
    v_lshlrev_b32 v5, 3, v5
    s_lshl_b32 s12, s8, 7
    v_add_u32 v5, s12, v5
    {EX(0xffff)}
    ds_write_b64 v5, v[32:33] offset:{QL}
    s_mov_b64 exec, -1
""")
cnt_add(C_Q, 3, 4)
STAMP(3)
P("""
    s_cmp_eq_u32 s8, 1
    s_cbranch_scc0 L_hq_noml
""")
cnt_wait(C_L, 8, 3)
P(f"""
    s_waitcnt vmcnt(0)
    v_lshrrev_b32 v4, 5, v0
    v_lshlrev_b32 v4, 5, v4               ; head*32
    ds_read_b128 v[48:51], v4 offset:{WL}
    ds_read_b128 v[52:55], v4 offset:{WL+16}
    ds_read_b128 v[56:59], v4 offset:{WM}
    ds_read_b128 v[60:63], v4 offset:{WM+16}
    s_waitcnt lgkmcnt(0)
    v_add_f32 v13, v48, v49
    v_add_f32 v14, v50, v51
    v_add_f32 v15, v52, v53
    v_add_f32 v13, v13, v14
    v_add_f32 v14, v54, v55
    v_add_f32 v13, v13, v15
    v_add_f32 v13, v13, v14
    v_max3_f32 v12, v56, v57, v58
    v_max3_f32 v12, v12, v59, v60
    v_max3_f32 v12, v12, v61, v62
    v_max_f32 v12, v12, v63
    v_mov_b32 v14, 0
    v_mov_b32 v15, 0
""")
tag4(12)
P(f"""
    v_lshlrev_b32 v4, 3, v4               ; head*256
    s_lshl_b32 s12, s4, 9
    s_lshl_b32 s13, s5, 4
    s_add_u32 s12, s12, s13
    s_add_u32 s12, s12, {OPM_OFF}
    {EX(0x100000001)}
    buffer_store_dwordx4 v[12:15], v4, s[44:47], s12 offen sc1
    s_mov_b64 exec, -1
L_hq_noml:
    s_cmp_eq_u32 s8, 0
    s_cbranch_scc0 L_done
""")
lp = L("h2poll"); ld = L("h2done")
P(f"""
    s_lshl_b32 s12, s6, 11
    s_add_u32 s12, s12, {OPD_OFF}
    s_lshr_b32 s13, s6, 2
    s_lshl_b32 s13, s13, 8
    s_add_u32 s13, s13, {OPM_OFF}
    v_lshrrev_b32 v3, 3, v0
    v_lshlrev_b32 v3, 4, v3               ; s_sub*16
    v_lshrrev_b32 v5, 4, v0
    v_and_b32 v6, 1, v5
    v_lshrrev_b32 v5, 1, v5
    v_lshl_add_u32 v5, v6, 1, v5
    v_and_b32 v6, 7, v0
    v_lshl_add_u32 v5, v6, 2, v5
    v_lshlrev_b32 v5, 2, v5
    s_mov_b32 s10, 0x3fb8aa3b
""")
cnt_wait(C_PV, 8, 7, sleep=0)
STAMP(4)
P(f"""
    s_mov_b32 s79, {SPIN}
{lp}:
    buffer_load_dwordx4 v[24:27], v3, s[44:47], s13 offen sc1
    buffer_load_dwordx4 v[28:31], v3, s[44:47], s13 offen offset:128 sc1
    buffer_load_dwordx4 v[16:19], v2, s[44:47], s12 offen sc1
    buffer_load_dwordx4 v[20:23], v2, s[44:47], s12 offen offset:1024 sc1
    s_waitcnt vmcnt(0)""")
check([16, 20, 24, 28], 32, ld)
polltail(lp, 0)
P(f"{ld}:")
STAMP(5)
P(f"""
    v_and_b32 v24, v1, v24
    v_and_b32 v28, v1, v28
    v_max_f32 v32, v24, v28
    v_and_b32 v25, v1, v25
    v_and_b32 v29, v1, v29
    v_max_f32_dpp v32, v32, v32 row_ror:8 row_mask:0xf bank_mask:0xf
    v_mov_b32 v33, v32
    v_and_b32 v16, v1, v16
    v_and_b32 v17, v1, v17
    v_permlane16_swap_b32 v32, v33
    v_max_f32 v32, v32, v33
    v_mov_b32 v33, v32
    v_and_b32 v18, v1, v18
    v_and_b32 v19, v1, v19
    v_permlane32_swap_b32 v32, v33
    v_max_f32 v32, v32, v33               ; global M
    v_sub_f32 v24, v24, v32
    v_sub_f32 v28, v28, v32
    v_mul_f32 v24, s10, v24
    v_mul_f32 v28, s10, v28
    v_exp_f32 v24, v24
    v_exp_f32 v28, v28
    v_and_b32 v20, v1, v20
    v_and_b32 v21, v1, v21
    v_and_b32 v22, v1, v22
    v_and_b32 v23, v1, v23
    v_mul_f32 v34, v24, v25
    v_fmac_f32 v34, v28, v29              ; L part
""")
for k in range(4):
    P(f"    v_mul_f32 v{16+k}, v24, v{16+k}\n    v_fmac_f32 v{16+k}, v28, v{20+k}")
P(f"""
    v_add_f32_dpp v34, v34, v34 row_ror:8 row_mask:0xf bank_mask:0xf
    v_permlane32_swap_b32 v16, v17
    v_permlane32_swap_b32 v18, v19
    v_mov_b32 v35, v34
    v_add_f32 v16, v16, v17
    v_add_f32 v18, v18, v19
    v_permlane16_swap_b32 v34, v35
    v_add_f32 v34, v34, v35
    v_permlane16_swap_b32 v16, v18
    v_mov_b32 v35, v34
    v_add_f32 v16, v16, v18
    s_nop 0
    v_permlane32_swap_b32 v34, v35
    v_add_f32 v34, v34, v35               ; L
    v_add_f32_dpp v16, v16, v16 row_ror:8 row_mask:0xf bank_mask:0xf
    v_rcp_f32 v35, v34
    s_nop 0
    v_mul_f32 v20, v16, v35
    v_fma_f32 v21, -v20, v34, v16
    v_fma_f32 v16, v21, v35, v20
    v_cvt_pk_bf16_f32 v16, v16, v16
    v_lshlrev_b32 v16, 16, v16
    s_mov_b32 s14, 0x00ff00ff
    s_mov_b32 s15, 0x00ff00ff
    s_mov_b64 exec, s[14:15]
    ds_write_b32 v5, v16 offset:{OL}
    s_mov_b64 exec, -1
""")
cnt_add(C_O, 3, 4)
P("    s_branch L_done")
P("L_hh:")
srd(56, 28, 5308416)
srd(64+4, 32, 5308416)
out.pop(); out.pop(); out.pop(); out.pop()
srd(52, 32, 5308416)
srd(76-20, 28, 5308416)
P(f"""
    s_mov_b32 s75, 0
    s_cmp_ge_u32 s2, 216
    s_cbranch_scc1 L_hh_noth0
    s_mul_i32 s9, s2, 43691
    s_lshr_b32 s9, s9, 17                 ; cg = b/3
    s_mul_i32 s10, s9, 3
    s_sub_u32 s10, s2, s10                ; kq' = b%3
    s_mul_i32 s11, s10, 192
    s_mul_i32 s12, s8, 48
    s_add_u32 s73, s11, s12
    s_mul_i32 s11, s73, 9216
    s_lshl_b32 s12, s9, 7
    s_add_u32 s11, s11, s12
""")
nh = tile_dma(56, None, 48, TH, 9216)
P("L_hh_noth0:")
TMR = 84
P(f"""
    s_mul_i32 s11, s6, 36
    s_mul_i32 s12, s8, 9
    s_add_u32 s11, s11, s12
    s_mul_i32 s11, s11, 1152
    s_add_u32 s74, s11, s72
    s_waitcnt lgkmcnt(0)
    s_barrier                             ; B0
""")
tags_ready()
P("""
    s_cmp_ge_u32 s2, 216
    s_cbranch_scc1 L_hh_x2
""")
P(f"    s_waitcnt vmcnt({nh})\n    s_branch L_hh_x3\nL_hh_x2:\n    s_waitcnt vmcnt(0)\nL_hh_x3:")
xprep(63)
layernorm(None)
layernorm(Y)
P("""
    s_cmp_ge_u32 s2, 216
    s_cbranch_scc1 L_hh_noth1
    s_waitcnt vmcnt(0) lgkmcnt(0)
""")
tile_gemv(48, TH, "s73", Y, PH, C_G2, f"""
    s_mul_i32 s9, s2, 43691
    s_lshr_b32 s9, s9, 17                 ; cg
    s_mul_i32 s10, s9, 3
    s_sub_u32 s10, s2, s10                ; kq'
    s_mul_i32 s11, s10, 18432
    s_lshl_b32 s12, s9, 8
    s_add_u32 s11, s11, s12
    s_add_u32 s11, s11, {HP_OFF}""")
P("L_hh_noth1:")
STAMP(2)
lp = L("hhpoll"); ld = L("hhdone")
srd(56, 30, 9216)
P(f"""
    s_cmp_eq_u32 s8, 0
    s_cbranch_scc0 L_hh_nopoll
    s_mul_i32 s11, s6, 144
    s_add_u32 s11, s11, {HP_OFF}
    v_lshrrev_b32 v4, 4, v0
    s_mov_b32 s14, 18432
    v_mul_lo_u32 v4, v4, s14
    v_and_b32 v5, 15, v0
    v_lshl_add_u32 v4, v5, 4, v4
    v_lshlrev_b32 v6, 3, v5
    s_mul_i32 s13, s6, 72
    v_mov_b32 v32, 0
    v_mov_b32 v33, 0
    v_mov_b32 v34, 0
    v_mov_b32 v35, 0
    {EX(0x1ff)}
    buffer_load_dwordx2 v[44:45], v6, s[56:59], s13 offen
    {EX(0x01ff01ff01ff)}
    s_mov_b32 s79, {SPIN}
{lp}:
    buffer_load_dwordx4 v[32:35], v4, s[44:47], s11 offen sc1
    s_waitcnt vmcnt(0)""")
check([32], 40, ld)
polltail(lp, 8)
P(f"{ld}:\n    s_mov_b64 exec, -1")
untag4(32)
allreduce_rows4(32, 36)
bf16r2(32, 33, 40); bf16r2(34, 35, 40)
unpack4(44, 36)
for k in range(4):
    P(f"    v_add_f32 v{32+k}, v{32+k}, v{36+k}")
bf16r2(32, 33, 40); bf16r2(34, 35, 40)
P("    s_mov_b32 s12, 0x3d372713             ; 0.044715\n    s_mov_b32 s13, 0x40135761             ; 2*0.7978845608*log2(e)")
for k in range(4):
    x, t = 32 + k, 36 + k
    P(f"""
    v_mul_f32 v{t}, v{x}, v{x}
    v_mul_f32 v{t}, v{t}, v{x}
    v_fma_f32 v{t}, v{t}, s12, v{x}
    v_mul_f32 v{t}, s13, v{t}
    v_exp_f32 v{t}, v{t}
    s_nop 0
    v_add_f32 v{t}, 1.0, v{t}
    v_rcp_f32 v{t}, v{t}
    s_nop 0
    v_fma_f32 v{x}, -v{t}, v{x}, v{x}""")
bf16r2(32, 33, 40); bf16r2(34, 35, 40)
P(f"""
    v_lshlrev_b32 v5, 4, v5
    {EX(0x1ff)}
    ds_write_b128 v5, v[32:35] offset:{HL}
    s_mov_b64 exec, -1
""")
cnt_add(C_H, 3, 4)
P("L_hh_nopoll:")
cnt_wait(C_H, 1, 3)
STAMP(4)
cnt_wait(C_VI, 8, 3)
P("    s_mov_b64 exec, s[70:71]")
for i in range(9):
    if i >= HPACE:
        P(f"    s_waitcnt vmcnt({HPACE-1})")
    P(f"    buffer_load_dwordx4 v[{TMR+4*i}:{TMR+4*i+3}], v2, s[52:55], s74 offen nt\n    s_add_u32 s74, s74, 1152")
P("    s_mov_b64 exec, -1")
STAMP(3)

P(f"""
    s_mul_i32 s12, s8, 36
    v_mov_b32 v3, s12
""")
for i in range(9):
    P(f"    ds_read_b32 v{32+i}, v3 offset:{HL+4*i}")
for k in range(8):
    P(f"    v_mov_b32 v{16+k}, 0")
P("    s_waitcnt vmcnt(0) lgkmcnt(0)")
for i in range(9):
    unpack4(TMR + 4 * i, 72); unpack4(TMR + 4 * i + 2, 76)
    for k in range(8):
        P(f"    v_fmac_f32 v{16+k}, v{32+i}, v{72+k}")
P(f"""
    s_mul_i32 s12, s8, 1280
    v_lshlrev_b32 v3, 5, v0
    v_add_u32 v3, s12, v3
    s_mov_b64 exec, s[70:71]
    ds_write_b128 v3, v[16:19] offset:{PBP}
    ds_write_b128 v3, v[20:23] offset:{PBP+16}
    s_mov_b64 exec, -1
""")
cnt_add(C_G3, 3, 4)
P("    s_cmp_eq_u32 s8, 1\n    s_cbranch_scc0 L_hh_nob")
cnt_wait(C_G3, 4, 3, sleep=0)
P("    v_lshlrev_b32 v3, 5, v0\n    s_mov_b64 exec, s[70:71]")
for w in range(4):
    P(f"    ds_read_b128 v[{32+8*w}:{35+8*w}], v3 offset:{PBP+1280*w}\n    ds_read_b128 v[{36+8*w}:{39+8*w}], v3 offset:{PBP+1280*w+16}")
P("    s_waitcnt lgkmcnt(0)")
for k in range(8):
    P(f"    v_add_f32 v{32+k}, v{32+k}, v{40+k}\n    v_add_f32 v{48+k}, v{48+k}, v{56+k}")
for k in range(8):
    P(f"    v_add_f32 v{32+k}, v{32+k}, v{48+k}")
tag4(32); tag4(36)
P(f"""
    s_mul_i32 s11, s6, 2304
    s_lshl_b32 s12, s72, 1                ; ch*1280
    s_add_u32 s11, s11, s12
    s_add_u32 s11, s11, {FPB_OFF}
    buffer_store_dwordx4 v[32:35], v3, s[44:47], s11 offen sc1
    buffer_store_dwordx4 v[36:39], v3, s[44:47], s11 offen offset:16 sc1
    s_mov_b64 exec, -1
L_hh_nob:
""")
STAMP(5)
lp = L("bpoll"); ld = L("bdone")
P(f"""
    s_cmp_lt_u32 s2, {RED0}
    s_cbranch_scc1 L_done
    s_sub_u32 s9, s2, {RED0}              ; k
    v_lshrrev_b32 v3, 3, v0
    s_mov_b32 s14, 2304
    v_mul_lo_u32 v3, v3, s14
    v_and_b32 v4, 7, v0
    v_lshl_add_u32 v3, v4, 4, v3
    s_mul_i32 s11, s8, {32*2304}
    s_lshl_b32 s12, s9, 7
    s_add_u32 s11, s11, s12
    s_add_u32 s11, s11, {FPB_OFF}
    s_add_u32 s12, s11, {8*2304}
    s_add_u32 s13, s11, {16*2304}
    s_add_u32 s14, s11, {24*2304}
    s_mov_b32 s79, {SPIN}
{lp}:
    buffer_load_dwordx4 v[8:11], v3, s[44:47], s11 offen sc1
    buffer_load_dwordx4 v[12:15], v3, s[44:47], s12 offen sc1
    buffer_load_dwordx4 v[16:19], v3, s[44:47], s13 offen sc1
    buffer_load_dwordx4 v[20:23], v3, s[44:47], s14 offen sc1
    s_waitcnt vmcnt(0)""")
check([8, 12, 16, 20], 32, ld)
polltail(lp, 8)
P(f"{ld}:")
untag4(8); untag4(12); untag4(16); untag4(20)
for k in range(4):
    P(f"    v_add_f32 v{8+k}, v{8+k}, v{12+k}\n    v_add_f32 v{16+k}, v{16+k}, v{20+k}")
for k in range(4):
    P(f"    v_add_f32 v{8+k}, v{8+k}, v{16+k}")
P(f"""
    s_nop 1
    v_permlane32_swap_b32 v8, v9
    v_permlane32_swap_b32 v10, v11
    v_add_f32 v8, v8, v9
    v_add_f32 v10, v10, v11
    s_nop 1
    v_permlane16_swap_b32 v8, v10
    v_add_f32 v8, v8, v10
    s_nop 1
    v_add_f32_dpp v8, v8, v8 row_ror:8 row_mask:0xf bank_mask:0xf
    v_lshrrev_b32 v5, 4, v0
    v_and_b32 v6, 1, v5
    v_lshrrev_b32 v5, 1, v5
    v_lshl_add_u32 v5, v6, 1, v5
    v_lshl_add_u32 v5, v4, 2, v5
    v_lshlrev_b32 v5, 2, v5
    s_lshl_b32 s14, s8, 7
    v_add_u32 v5, s14, v5
    s_mov_b32 s14, 0x00ff00ff
    s_mov_b32 s15, 0x00ff00ff
    s_mov_b64 exec, s[14:15]
    ds_write_b32 v5, v8 offset:{RB}
    s_mov_b64 exec, -1
""")
cnt_add(C_RB, 3, 4)
P("    s_branch L_done")

KR, VR, Q0, Q1, X, A0, A1 = 8, 40, 72, 76, 80, 96, 104
P("L_stream:")
srd(48, 18, 0x10000000)
srd(52, 20, 0x10000000)
P(f"""
    s_sub_u32 s15, s3, 8                  ; w
    s_lshl_b32 s8, s4, 24
    s_lshl_b32 s9, s5, 16
    s_add_u32 s8, s8, s9
    s_add_u32 s8, s8, 0xF00000
    s_lshl_b32 s9, s15, 13
    s_add_u32 s8, s8, s9
    s_add_u32 s9, s8, 4096
""")
def kvload(srdn, base, i):
    so = "s8" if i < 4 else "s9"
    P(f"    buffer_load_dwordx4 v[{base+4*i}:{base+4*i+3}], v2, s[{srdn}:{srdn+3}], {so} offen offset:{(i%4)*1024} nt")
seq = [(48, KR, i) for i in range(8)] + [(52, VR, i) for i in range(8)]
for n in range(SPRE): kvload(*seq[n])
P("""
    s_waitcnt lgkmcnt(0)
    s_barrier                             ; B0
""")
for n in range(SPRE, PACE): kvload(*seq[n])
tags_ready()
nxt = [PACE]
def issue_next():
    n = nxt[0]
    if n >= 16: return
    P(f"    s_waitcnt vmcnt({(PACE if n < 8 else PACE2)-1})")
    kvload(*seq[n])
    if n == 7: cnt_add(C_KI, 3, 4)
    if n == VT: cnt_add(C_VI, 3, 4)
    nxt[0] += 1
P("    s_mov_b32 s77, 0")
while nxt[0] < 16:
    issue_next()
    n = nxt[0] - 1
    if n >= 8 + max(PACE, PACE2) - 1 and n < 15:
        sk = L("sk")
        P(f"""
    s_cmp_lg_u32 s77, 0
    s_cbranch_scc1 {sk}
    v_mov_b32 v3, {C_Q}
    ds_read_b32 v3, v3
    s_waitcnt lgkmcnt(0)
    v_readfirstlane_b32 s78, v3
    s_cmp_ge_u32 s78, 4
    s_cbranch_scc0 {sk}
    s_call_b64 s[74:75], L_scores
{sk}:""")
STAMP(1)
P("""
    s_cmp_lg_u32 s77, 0
    s_cbranch_scc1 L_s_scored
""")
cnt_wait(C_Q, 4, 3)
P("""
    s_call_b64 s[74:75], L_scores
L_s_scored:
""")
to_loads()
for j in range(16):
    P(f"    v_mov_b32 v{A0+j}, 0")
for i in range(8):
    P(f"    s_waitcnt vmcnt({7-i+4})")
    unpack4(VR + 4 * i, 112)
    unpack4(VR + 4 * i + 2, 116)
    for j in range(4):
        P(f"    v_pk_fma_f32 v[{A0+2*j}:{A0+2*j+1}], v[{112+2*j}:{113+2*j}], v[{KR+2*i}:{KR+2*i+1}], v[{A0+2*j}:{A0+2*j+1}] op_sel_hi:[1,0,1]")
        P(f"    v_pk_fma_f32 v[{A1+2*j}:{A1+2*j+1}], v[{112+2*j}:{113+2*j}], v[{KR+16+2*i}:{KR+16+2*i+1}], v[{A1+2*j}:{A1+2*j+1}] op_sel_hi:[1,0,1]")
STAMP(3)
P("    s_nop 1")
for j in range(8):
    P(f"    v_permlane32_swap_b32 v{A0+j}, v{A1+j}")
for j in range(8):
    P(f"    v_add_f32 v{A0+j}, v{A0+j}, v{A1+j}")
P("    s_nop 1")
for j in range(4):
    P(f"    v_permlane16_swap_b32 v{A0+j}, v{A0+4+j}")
for j in range(4):
    P(f"    v_add_f32 v{A0+j}, v{A0+j}, v{A0+4+j}")
P(f"""
    v_lshrrev_b32 v3, 5, v0
    v_lshlrev_b32 v3, 9, v3
    v_and_b32 v4, 15, v0
    v_lshl_add_u32 v3, v4, 5, v3
    v_and_b32 v4, 16, v0
    v_add_u32 v3, v3, v4
    s_lshl_b32 s11, s15, 10
    v_add_u32 v3, s11, v3
    ds_write_b128 v3, v[{A0}:{A0+3}] offset:{PV}
""")
cnt_add(C_PV, 3, 4)
P(f"""
    s_cmp_lg_u32 s15, 0
    s_cbranch_scc1 L_s_w0skip
""")
cnt_wait(C_PV, 8, 3, sleep=0)
for w in range(8):
    P(f"    ds_read_b128 v[{8+4*w}:{11+4*w}], v2 offset:{PV+1024*w}")
P(f"""
    v_lshrrev_b32 v5, 3, v0
    v_lshlrev_b32 v5, 11, v5
    v_and_b32 v6, 7, v0
    v_lshl_add_u32 v5, v6, 4, v5
    s_lshl_b32 s12, s4, 14
    s_lshl_b32 s13, s5, 7
    s_add_u32 s12, s12, s13
    s_add_u32 s12, s12, {OPD_OFF}
    s_waitcnt lgkmcnt(0)
""")
for k in range(4):
    P(f"    v_add_f32 v{8+k}, v{8+k}, v{12+k}\n    v_add_f32 v{16+k}, v{16+k}, v{20+k}\n    v_add_f32 v{24+k}, v{24+k}, v{28+k}\n    v_add_f32 v{32+k}, v{32+k}, v{36+k}")
for k in range(4):
    P(f"    v_add_f32 v{8+k}, v{8+k}, v{16+k}\n    v_add_f32 v{24+k}, v{24+k}, v{32+k}")
for k in range(4):
    P(f"    v_add_f32 v{8+k}, v{8+k}, v{24+k}")
tag4(8)
P(f"""
    buffer_store_dwordx4 v[8:11], v5, s[44:47], s12 offen sc1
""")
STAMP(4)
P(f"""
    s_waitcnt vmcnt(1)
    s_branch L_s_tail
L_s_w0skip:
    s_waitcnt vmcnt(0)
L_s_tail:
""")
for r in range(4):
    unpack4(TOR + 4 * r, 8 + 8 * r); unpack4(TOR + 4 * r + 2, 12 + 8 * r)
P(f"""
    s_lshl_b32 s11, s15, 4
    v_mov_b32 v40, s11
    s_mul_i32 s11, s15, 1280
    v_lshlrev_b32 v41, 5, v0
    v_add_u32 v41, s11, v41
""")
cnt_wait(C_O, 1, 3, sleep=0)
P(f"""
    ds_read_b128 v[4:7], v40 offset:{OL}
    s_waitcnt lgkmcnt(0)""")
for k in range(8):
    P(f"    v_mul_f32 v{8+k}, v4, v{8+k}\n    v_fmac_f32 v{8+k}, v5, v{16+k}\n    v_fmac_f32 v{8+k}, v6, v{24+k}\n    v_fmac_f32 v{8+k}, v7, v{32+k}")
P(f"""
    s_mov_b64 exec, s[70:71]
    ds_write_b128 v41, v[8:11] offset:{PA}
    ds_write_b128 v41, v[12:15] offset:{PA+16}
    s_mov_b64 exec, -1
""")
cnt_add(C_PA, 3, 4)
P(f"""
    s_cmp_ge_u32 s15, 5
    s_cbranch_scc1 L_f_nos2
    s_cmp_eq_u32 s15, 4
    s_cselect_b32 s12, s7, 0
    s_cmp_lg_u32 s12, 0
    s_cbranch_scc1 L_f_nos2
    s_lshl_b32 s11, s15, 6
    v_add_u32 v3, s11, v0                 ; t
    v_lshrrev_b32 v4, 2, v3               ; quad
    v_and_b32 v5, 3, v3
    v_mul_u32_u24 v5, {2*1280}, v5
    v_lshl_add_u32 v5, v4, 4, v5
    v_lshlrev_b32 v4, 4, v4               ; quad*16
    s_mul_i32 s11, s6, 2304
    s_lshl_b32 s12, s72, 1
    s_add_u32 s11, s11, s12
    s_add_u32 s11, s11, {FPA_OFF}
""")
cnt_wait(C_PA, 8, 3, sleep=0)
P(f"""
    ds_read_b128 v[8:11], v5 offset:{PA}
    ds_read_b128 v[12:15], v5 offset:{PA+1280}
    s_waitcnt lgkmcnt(0)
""")
for k in range(4):
    P(f"    v_add_f32 v{8+k}, v{8+k}, v{12+k}")
P("    s_nop 0")
for k in range(4):
    P(f"    v_add_f32_dpp v{8+k}, v{8+k}, v{8+k} quad_perm:[1,0,3,2] row_mask:0xf bank_mask:0xf")
for k in range(4):
    P(f"    v_add_f32_dpp v{8+k}, v{8+k}, v{8+k} quad_perm:[2,3,0,1] row_mask:0xf bank_mask:0xf")
tag4(8)
P(f"""
    s_mov_b32 s12, 0x11111111
    s_mov_b32 s13, 0x11111111
    s_mov_b64 exec, s[12:13]
    buffer_store_dwordx4 v[8:11], v4, s[44:47], s11 offen sc1
    s_mov_b64 exec, -1
L_f_nos2:
""")
STAMP(6)
P(f"""
    s_cmp_lt_u32 s2, {RED0}
    s_cbranch_scc1 L_done
    s_sub_u32 s8, s2, {RED0}              ; k: columns 32k..32k+31
    v_lshrrev_b32 v3, 3, v0
    s_mov_b32 s14, 2304
    v_mul_lo_u32 v3, v3, s14
    v_and_b32 v4, 7, v0
    v_lshl_add_u32 v3, v4, 4, v3
    s_mul_i32 s11, s15, {16*2304}
    s_lshl_b32 s12, s8, 7
    s_add_u32 s11, s11, s12
    s_add_u32 s11, s11, {FPA_OFF}
    s_add_u32 s12, s11, {8*2304}
""")
srd(48, 16, 1152)
srd(52, 34, 1152)
srd(56, 36, 1152)
lp = L("h3poll"); ld = L("h3done")
P(f"""
    s_lshl_b32 s13, s8, 6
    v_lshlrev_b32 v6, 1, v0
    buffer_load_ushort v40, v6, s[48:51], s13 offen
    buffer_load_ushort v41, v6, s[52:55], s13 offen
    v_lshrrev_b32 v5, 4, v0
    v_and_b32 v6, 1, v5
    v_lshrrev_b32 v5, 1, v5
    v_lshl_add_u32 v5, v6, 1, v5
    v_lshl_add_u32 v5, v4, 2, v5          ; column 0..31
    v_lshlrev_b32 v5, 2, v5
    s_lshl_b32 s14, s15, 7
    v_add_u32 v5, s14, v5
    s_mov_b32 s79, {SPIN}
{lp}:
    buffer_load_dwordx4 v[8:11], v3, s[44:47], s11 offen sc1
    buffer_load_dwordx4 v[12:15], v3, s[44:47], s12 offen sc1
    s_waitcnt vmcnt(0)""")
check([8, 12], 16, ld)
polltail(lp, 0)
P(f"{ld}:")
untag4(8); untag4(12)
for k in range(4):
    P(f"    v_add_f32 v{8+k}, v{8+k}, v{12+k}")
P(f"""
    s_nop 1
    v_permlane32_swap_b32 v8, v9
    v_permlane32_swap_b32 v10, v11
    v_add_f32 v8, v8, v9
    v_add_f32 v10, v10, v11
    s_nop 1
    v_permlane16_swap_b32 v8, v10
    v_add_f32 v8, v8, v10
    s_nop 1
    v_add_f32_dpp v8, v8, v8 row_ror:8 row_mask:0xf bank_mask:0xf
    s_mov_b32 s10, 0x00ff00ff
    s_mov_b32 s11, 0x00ff00ff
    s_mov_b64 exec, s[10:11]
    ds_write_b32 v5, v8 offset:{RA}
    s_mov_b64 exec, -1
""")
cnt_add(C_RA, 3, 4)
P(f"""
    s_cmp_lg_u32 s15, 0
    s_cbranch_scc1 L_done
""")
cnt_wait(C_RB, 4, 3, sleep=0)
cnt_wait(C_RA, 8, 3, sleep=0)
P(f"""
    v_lshlrev_b32 v3, 2, v0
    v_and_b32 v3, 0x7f, v3
""")
for w in range(8):
    P(f"    ds_read_b32 v{8+w}, v3 offset:{RA+128*w}")
for w in range(4):
    P(f"    ds_read_b32 v{24+w}, v3 offset:{RB+128*w}")
P("    s_waitcnt lgkmcnt(0)")
for k in range(4):
    P(f"    v_add_f32 v{8+k}, v{8+k}, v{12+k}")
P("    v_add_f32 v24, v24, v25\n    v_add_f32 v26, v26, v27")
for k in range(2):
    P(f"    v_add_f32 v{8+k}, v{8+k}, v{10+k}")
P("    v_add_f32 v24, v24, v26\n    v_add_f32 v8, v8, v9")
bf16r2(8, 24, 4)
P("""
    v_lshlrev_b32 v40, 16, v40
    v_lshlrev_b32 v41, 16, v41
    v_add_f32 v8, v40, v8
    v_add_f32 v24, v24, v41
""")
bf16r2(8, 24, 4)
P(f"""
    v_add_f32 v8, v8, v24
    v_cvt_pk_bf16_f32 v8, v8, v8
    v_lshlrev_b32 v6, 1, v0
    {EX(0xffffffff)}
    buffer_store_short v8, v6, s[56:59], s13 offen
    s_mov_b64 exec, -1
    s_cmp_lg_u32 s8, 0
    s_cbranch_scc1 L_done
    v_mov_b32 v32, s42
    v_mov_b32 v34, 0
    s_mov_b64 exec, 1
    buffer_store_dword v32, v34, s[44:47], 0 offen
    s_mov_b64 exec, -1
L_done:
""")
STAMP(7)
if STAMPS:
    P(f"""
    s_waitcnt lgkmcnt(0)
    s_lshl_b32 s11, s2, 4
    s_add_u32 s11, s11, s3
    s_lshl_b32 s11, s11, 6
    s_add_u32 s11, s11, {STAMP_OFF}
    v_mov_b32 v3, 0
    s_mov_b64 exec, 1
""")
    for q in range(4):
        for k in range(4):
            P(f"    v_mov_b32 v{32+k}, s{84+4*q+k}")
        P(f"    buffer_store_dwordx4 v[32:35], v3, s[44:47], s11 offen offset:{16*q}\n    s_nop 1")
    P("    s_mov_b64 exec, -1")
P("    s_branch L_end\nL_scores:")
STAMP(2)
P(f"""
    v_and_b32 v3, 15, v0
    v_lshlrev_b32 v3, 4, v3
    ds_read_b128 v[{Q0}:{Q0+3}], v3 offset:{QL}
    ds_read_b128 v[{Q1}:{Q1+3}], v3 offset:{QL+256}
    s_waitcnt lgkmcnt(0)
""")
for i in range(8):
    k = KR + 4 * i
    P(f"""
    v_dot2_f32_bf16 v{X+i}, v{k}, v{Q0}, 0
    v_dot2_f32_bf16 v{X+8+i}, v{k}, v{Q1}, 0
    v_dot2_f32_bf16 v{X+i}, v{k+1}, v{Q0+1}, v{X+i}
    v_dot2_f32_bf16 v{X+8+i}, v{k+1}, v{Q1+1}, v{X+8+i}
    v_dot2_f32_bf16 v{X+i}, v{k+2}, v{Q0+2}, v{X+i}
    v_dot2_f32_bf16 v{X+8+i}, v{k+2}, v{Q1+2}, v{X+8+i}
    v_dot2_f32_bf16 v{X+i}, v{k+3}, v{Q0+3}, v{X+i}
    v_dot2_f32_bf16 v{X+8+i}, v{k+3}, v{Q1+3}, v{X+8+i}""")
P("    s_nop 3")
for v in range(8):
    P(f"    v_add_f32_dpp v{X+v}, v{X+v}, v{X+v} row_ror:8 row_mask:0xf bank_mask:0xf")
    P(f"    v_add_f32_dpp v{X+v}, v{X+v+8}, v{X+v+8} row_ror:8 row_mask:0xf bank_mask:0xc")
for v in range(4):
    P(f"    v_add_f32_dpp v{X+v}, v{X+v}, v{X+v} row_half_mirror row_mask:0xf bank_mask:0xf")
    P(f"    v_add_f32_dpp v{X+v}, v{X+v+4}, v{X+v+4} row_half_mirror row_mask:0xf bank_mask:0xa")
P(f"""
    s_mov_b32 s12, 0xcccccccc
    s_mov_b32 s13, 0xcccccccc
    s_mov_b32 s10, 0xaaaaaaaa
    s_mov_b32 s11, 0xaaaaaaaa
    v_add_f32_dpp v{X+8}, v{X}, v{X} quad_perm:[2,3,0,1] row_mask:0xf bank_mask:0xf
    v_add_f32_dpp v{X+9}, v{X+2}, v{X+2} quad_perm:[2,3,0,1] row_mask:0xf bank_mask:0xf
    v_add_f32_dpp v{X+10}, v{X+1}, v{X+1} quad_perm:[2,3,0,1] row_mask:0xf bank_mask:0xf
    v_add_f32_dpp v{X+11}, v{X+3}, v{X+3} quad_perm:[2,3,0,1] row_mask:0xf bank_mask:0xf
    v_cndmask_b32 v{X}, v{X+8}, v{X+9}, s[12:13]
    v_cndmask_b32 v{X+1}, v{X+10}, v{X+11}, s[12:13]
    s_nop 1
    v_add_f32_dpp v{X+8}, v{X}, v{X} quad_perm:[1,0,3,2] row_mask:0xf bank_mask:0xf
    v_add_f32_dpp v{X+9}, v{X+1}, v{X+1} quad_perm:[1,0,3,2] row_mask:0xf bank_mask:0xf
    v_cndmask_b32 v{X}, v{X+8}, v{X+9}, s[10:11]
""")
R = X
bf16r1(R)
P(f"    s_mov_b32 s10, 0x3db504f3          ; 128^-0.5\n    v_mul_f32 v{R}, s10, v{R}")
bf16r1(R)
def head_allreduce(op, v, t):
    P(f"""
    s_nop 1
    {op}_dpp v{v}, v{v}, v{v} quad_perm:[1,0,3,2] row_mask:0xf bank_mask:0xf
    s_nop 1
    {op}_dpp v{v}, v{v}, v{v} quad_perm:[2,3,0,1] row_mask:0xf bank_mask:0xf
    s_nop 1
    {op}_dpp v{v}, v{v}, v{v} row_half_mirror row_mask:0xf bank_mask:0xf
    v_mov_b32 v{t}, v{v}
    s_nop 1
    v_permlane16_swap_b32 v{v}, v{t}
    {op} v{v}, v{v}, v{t}
    v_mov_b32 v{t}, v{v}
    s_nop 1
    v_permlane32_swap_b32 v{v}, v{t}
    {op} v{v}, v{v}, v{t}""")
P(f"    v_mov_b32 v4, v{R}")
head_allreduce("v_max_f32", 4, 5)
P(f"""
    v_and_b32 v6, 8, v0
    v_lshlrev_b32 v6, 2, v6               ; head*32
    s_lshl_b32 s11, s15, 2
    v_add_u32 v3, s11, v6
    {EX(0x101)}
    ds_write_b32 v3, v4 offset:{WM}
    s_mov_b64 exec, -1
""")
cnt_add(C_M, 3, 5)
cnt_wait(C_M, 8, 3, sleep=0)
P(f"""
    ds_read_b128 v[112:115], v6 offset:{WM}
    ds_read_b128 v[116:119], v6 offset:{WM+16}
    s_waitcnt lgkmcnt(0)
    v_max3_f32 v4, v112, v113, v114
    v_max3_f32 v4, v4, v115, v116
    v_max3_f32 v4, v4, v117, v118
    v_max_f32 v4, v4, v119
    s_mov_b32 s10, 0x3fb8aa3b          ; log2(e)
    v_sub_f32 v{R}, v{R}, v4
    v_mul_f32 v{R}, s10, v{R}
    v_exp_f32 v{R}, v{R}
    s_nop 0
    v_mov_b32 v4, v{R}
""")
head_allreduce("v_add_f32", 4, 5)
P(f"""
    v_add_u32 v3, s11, v6
    {EX(0x101)}
    ds_write_b32 v3, v4 offset:{WL}
    s_mov_b64 exec, -1
""")
cnt_add(C_L, 3, 5)
for k in range(16):
    P(f"    v_mov_b32_dpp v{KR+2*k}, v{R} row_newbcast:{k} row_mask:0xf bank_mask:0xf")
P("    s_mov_b32 s77, 1\n    s_setpc_b64 s[74:75]")
P(f"""
L_end:
    s_endpgm
.section .rodata,"a"
.p2align 6
.amdhsa_kernel {NAME}_kernel
  .amdhsa_next_free_vgpr 128
  .amdhsa_next_free_sgpr 102
  .amdhsa_accum_offset 128
  .amdhsa_group_segment_fixed_size 0
  .amdhsa_kernarg_size 104
  .amdhsa_user_sgpr_count 2
  .amdhsa_user_sgpr_kernarg_segment_ptr 1
  .amdhsa_system_sgpr_workgroup_id_x 1
.end_amdhsa_kernel""")
print("\n".join(out))
```

```python
import sys
NAME = "parallel_sum__sliding_block_cached__mixer_channel_mlp__decode"
STAMPS = "--stamps" in sys.argv
NOPOLL = "--nopoll" in sys.argv
PACE = 3; PACE2 = None; HPACE = 3; PRE = 3; SPRE = 0; NB = 3; MID = 0; PIPEH1 = 1; VT = 15; LAZY = 1; TOLATE = 1; TMLATE = 1; PRIO = 0; SLP = 3; BSLP = 8; HSLP = 8; TOAT = -1
for a in sys.argv[1:]:
    if a.startswith("--pace="): PACE = int(a.split("=")[1])
    if a.startswith("--pace2="): PACE2 = int(a.split("=")[1])
    if a.startswith("--hpace="): HPACE = int(a.split("=")[1])
    if a.startswith("--pre="): PRE = int(a.split("=")[1])
    if a.startswith("--spre="): SPRE = int(a.split("=")[1])
    if a.startswith("--nb="): NB = int(a.split("=")[1])
    if a.startswith("--mid="): MID = int(a.split("=")[1])
    if a.startswith("--vt="): VT = int(a.split("=")[1])
    if a.startswith("--lazy="): LAZY = int(a.split("=")[1])
    if a.startswith("--tolate="): TOLATE = int(a.split("=")[1])
    if a.startswith("--prio="): PRIO = int(a.split("=")[1])
    if a.startswith("--bslp="): BSLP = int(a.split("=")[1])
    if a.startswith("--toat="): TOAT = int(a.split("=")[1])
    if a.startswith("--hslp="): HSLP = int(a.split("=")[1])
    if a.startswith("--slp="): SLP = int(a.split("=")[1])
    if a.startswith("--tmlate="): TMLATE = int(a.split("=")[1])
if PACE2 is None: PACE2 = PACE
SPIN = "1" if NOPOLL else "0x40000"

QP_OFF, HP_OFF, OPD_OFF, OPM_OFF, FPA_OFF, FPB_OFF, STAMP_OFF = 0x1000, 0x12000, 0x20000, 0x60000, 0x64000, 0xB0000, 0x200000
C_G1, C_Q, C_M, C_G2, C_PV, C_G3, C_H, C_L, C_VI, C_KI, C_O, C_PA, C_RA, C_RB = 0, 4, 8, 16, 20, 24, 28, 32, 36, 40, 44, 48, 52, 56
XN, Y, QL, WM, WL, HL, OL, PV = 0x100, 0xB00, 0x1500, 0x1700, 0x1740, 0x1800, 0x1900, 0x2000
PQ, PH, PBP, PA, RA, RB = 0x4000, 0x5000, 0x6000, 0x8000, 0xD000, 0xD800
TQ, TH = 0xE000, 0x12800
LDS_BYTES = 0x18800
RED0 = 238
TORS = [100, 104, 108, 120]

out = []
def P(s=""):
    for line in s.strip("\n").split("\n"):
        out.append(line)
uid = [0]
def L(base):
    uid[0] += 1
    return f"L_{base}_{uid[0]}"
def STAMP(idx):
    if STAMPS:
        P(f"    s_memrealtime s[{84+2*idx}:{85+2*idx}]")
def srd(d, ptr, nbytes):
    P(f"""
    s_mov_b32 s{d}, s{ptr}
    s_and_b32 s{d+1}, s{ptr+1}, 0xffff
    s_mov_b32 s{d+2}, {nbytes}
    s_mov_b32 s{d+3}, 0x00020000""")
def EX(mask):
    return f"s_mov_b32 exec_lo, {hex(mask & 0xffffffff)}\n    s_mov_b32 exec_hi, {hex(mask >> 32)}"
def rowreduce(op, v):
    for ror in (8, 4, 2, 1):
        P(f"    s_nop 1\n    {op}_dpp v{v}, v{v}, v{v} row_ror:{ror} row_mask:0xf bank_mask:0xf")
def crossrow(op, v):
    P(f"""
    s_nop 0
    v_readlane_b32 s80, v{v}, 0
    v_readlane_b32 s81, v{v}, 16
    v_readlane_b32 s82, v{v}, 32
    v_readlane_b32 s83, v{v}, 48
    v_mov_b32 v{v}, s80
    {op} v{v}, s81, v{v}
    {op} v{v}, s82, v{v}
    {op} v{v}, s83, v{v}""")
def cnt_add(off, va, vb):
    P(f"""
    s_waitcnt lgkmcnt(0)
    v_mov_b32 v{va}, {off}
    v_mov_b32 v{vb}, 1
    s_mov_b64 exec, 1
    ds_add_u32 v{va}, v{vb}
    s_mov_b64 exec, -1""")
def cnt_wait(off, target, vt, sleep=1):
    l0, l1 = L("cw"), L("cwd")
    P(f"""
    s_mov_b32 s79, 0x40000
{l0}:
    v_mov_b32 v{vt}, {off}
    ds_read_b32 v{vt}, v{vt}
    s_waitcnt lgkmcnt(0)
    v_readfirstlane_b32 s78, v{vt}
    s_cmp_ge_u32 s78, {target}
    s_cbranch_scc1 {l1}
    {"s_sleep %d" % sleep if sleep else ""}
    s_sub_u32 s79, s79, 1
    s_cmp_lg_u32 s79, 0
    s_cbranch_scc1 {l0}
{l1}:""")
def bf16r2(a, b, t):
    P(f"""
    v_cvt_pk_bf16_f32 v{t}, v{a}, v{b}
    v_lshlrev_b32 v{a}, 16, v{t}
    v_and_b32 v{b}, 0xffff0000, v{t}""")
def bf16r1(a):
    P(f"""
    v_cvt_pk_bf16_f32 v{a}, v{a}, v{a}
    v_lshlrev_b32 v{a}, 16, v{a}""")
def unpack4(src, dst):
    P(f"""
    v_lshlrev_b32 v{dst}, 16, v{src}
    v_and_b32 v{dst+1}, 0xffff0000, v{src}
    v_lshlrev_b32 v{dst+2}, 16, v{src+1}
    v_and_b32 v{dst+3}, 0xffff0000, v{src+1}""")
def tag4(r):
    for k in range(4):
        P(f"    v_and_or_b32 v{r+k}, v{r+k}, v1, s{64+k}")
def untag4(r):
    for k in range(4):
        P(f"    v_and_b32 v{r+k}, v1, v{r+k}")
def check(regs, t, okl):
    first = True
    for r in regs:
        if first:
            P(f"""
    v_xor_b32 v{t}, s64, v{r}
    v_xor_b32 v{t+1}, s65, v{r+1}
    v_xor_b32 v{t+2}, s66, v{r+2}
    v_or3_b32 v{t}, v{t}, v{t+1}, v{t+2}
    v_xor_b32 v{t+1}, s67, v{r+3}
    v_or_b32 v{t}, v{t}, v{t+1}""")
            first = False
        else:
            P(f"""
    v_xor_b32 v{t+1}, s64, v{r}
    v_xor_b32 v{t+2}, s65, v{r+1}
    v_or3_b32 v{t}, v{t}, v{t+1}, v{t+2}
    v_xor_b32 v{t+1}, s66, v{r+2}
    v_xor_b32 v{t+2}, s67, v{r+3}
    v_or3_b32 v{t}, v{t}, v{t+1}, v{t+2}""")
    P(f"""
    v_and_b32 v{t}, 0xff, v{t}
    v_cmp_ne_u32 vcc, 0, v{t}
    s_nop 1
    s_cbranch_vccz {okl}""")
def polltail(lp, sleep):
    P(f"""
    {"s_sleep %d" % sleep if sleep else ""}
    s_sub_u32 s79, s79, 1
    s_cmp_lg_u32 s79, 0
    s_cbranch_scc1 {lp}""")
def pipe_poll(name, issue, ngran, bufs, dst, t):
    nb = len(bufs)
    lp = L(name); done = L(name + "d")
    oks = [L(name + "ok") for _ in bufs]
    P(f"    s_mov_b32 s79, {SPIN}")
    for b in bufs:
        issue(b)
        P("    s_sleep 2")
    P(f"{lp}:")
    for k, b in enumerate(bufs):
        P(f"    s_waitcnt vmcnt({(nb-1)*ngran})")
        check([b + 4 * g for g in range(ngran)], t, oks[k])
        issue(b)
    P(f"""
    s_sub_u32 s79, s79, 1
    s_cmp_lg_u32 s79, 0
    s_cbranch_scc1 {lp}""")
    for k, b in enumerate(bufs):
        P(f"{oks[k]}:")
        if b != dst:
            for r in range(4 * ngran):
                P(f"    v_mov_b32 v{dst+r}, v{b+r}")
        if k != nb - 1:
            P(f"    s_branch {done}")
    P(f"{done}:")
def allreduce_rows4(r, t):
    for k in range(4): P(f"    v_mov_b32 v{t+k}, v{r+k}")
    P("    s_nop 1")
    for k in range(4): P(f"    v_permlane16_swap_b32 v{r+k}, v{t+k}")
    for k in range(4): P(f"    v_add_f32 v{r+k}, v{r+k}, v{t+k}")
    for k in range(4): P(f"    v_mov_b32 v{t+k}, v{r+k}")
    P("    s_nop 1")
    for k in range(4): P(f"    v_permlane32_swap_b32 v{r+k}, v{t+k}")
    for k in range(4): P(f"    v_add_f32 v{r+k}, v{r+k}, v{t+k}")
E = 8
def layernorm(ldsoff):
    P(f"    v_add_f32 v4, v{E}, v{E+1}")
    for k in range(2, 10):
        P(f"    v_add_f32 v4, v4, v{E+k}")
    rowreduce("v_add_f32", 4); crossrow("v_add_f32", 4)
    P(f"    s_mov_b32 s10, 0x3ae38e39\n    v_mul_f32 v4, s10, v4      ; mean")
    P("    v_mov_b32 v5, 0")
    for k in range(10):
        P(f"    v_sub_f32 v6, v{E+k}, v4")
        if k >= 8:
            P("    v_mul_f32 v6, v6, v30")
        P("    v_fmac_f32 v5, v6, v6")
    rowreduce("v_add_f32", 5); crossrow("v_add_f32", 5)
    P("    v_mul_f32 v5, s10, v5      ; var")
    bf16r2(4, 5, 6)
    P("    v_add_f32 v5, 0x3727c5ac, v5")
    bf16r1(5)
    P("    v_sqrt_f32 v5, v5\n    s_nop 0")
    bf16r1(5)
    P("    v_rcp_f32 v7, v5\n    s_nop 0")
    for k in range(0, 10, 2):
        a, b = E + k, E + k + 1
        P(f"    v_sub_f32 v{a}, v{a}, v4\n    v_sub_f32 v{b}, v{b}, v4")
        bf16r2(a, b, 6)
        for t in (a, b):
            P(f"""
    v_mul_f32 v6, v{t}, v7
    v_fma_f32 v{t}, -v6, v5, v{t}
    v_fma_f32 v{t}, v{t}, v7, v6""")
        bf16r2(a, b, 6)
    P(f"    v_mul_f32 v{E+8}, v{E+8}, v30\n    v_mul_f32 v{E+9}, v{E+9}, v30")
    if ldsoff is not None:
        P(f"""
    v_lshlrev_b32 v6, 5, v0
    v_lshlrev_b32 v7, 3, v0
    ds_write_b128 v6, v[{E}:{E+3}] offset:{ldsoff}
    ds_write_b128 v6, v[{E+4}:{E+7}] offset:{ldsoff+16}
    ds_write_b64 v7, v[{E+8}:{E+9}] offset:{ldsoff+2048}""")
def tile_dma(srdn, stride_log_or_mul, nrows, ldsbase, stride):
    P(f"""
    v_lshrrev_b32 v4, 3, v0
    s_mov_b32 s14, {stride}
    v_mul_lo_u32 v4, v4, s14
    v_and_b32 v5, 7, v0
    v_lshl_add_u32 v4, v5, 4, v4
    s_mul_i32 s12, s8, {nrows*128}
    s_add_u32 s12, s12, {ldsbase}""")
    nl = (nrows + 7) // 8
    for i in range(nl):
        rem = nrows - 8 * i
        if rem < 8:
            P("    " + EX((1 << (8 * rem)) - 1))
        P(f"""
    s_mov_b32 m0, s12
    s_nop 0
    buffer_load_dwordx4 v4, s[{srdn}:{srdn+3}], s11 offen nt lds
    s_add_u32 s11, s11, {8*stride}
    s_add_u32 s12, s12, 1024""")
        if rem < 8:
            P("    s_mov_b64 exec, -1")
    return nl
def tile_gemv(nrows, ldsbase, multsreg, multoff, partoff, cntoff, pub_sexpr_code):
    n = nrows // 4
    P(f"""
    v_and_b32 v3, 15, v0
    v_lshrrev_b32 v4, 4, v0               ; ph
    s_mul_i32 s12, s8, {nrows*128}
    s_add_u32 s12, s12, {ldsbase}
    v_lshlrev_b32 v5, 7, v4
    v_lshl_add_u32 v5, v3, 3, v5
    v_add_u32 v5, s12, v5
    s_lshl_b32 s12, {multsreg}, 2
    v_lshl_add_u32 v6, v4, 2, s12
""")
    for i in range(n):
        P(f"    ds_read_b64 v[{32+2*i}:{33+2*i}], v5 offset:{512*i}\n    ds_read_b32 v{56+i}, v6 offset:{multoff+16*i}")
    P("    v_mov_b32 v20, 0\n    v_mov_b32 v21, 0\n    v_mov_b32 v22, 0\n    v_mov_b32 v23, 0")
    for i in range(n):
        P(f"    s_waitcnt lgkmcnt({min(15, 2*(n-1-i))})")
        unpack4(32 + 2 * i, 72)
        for k in range(4):
            P(f"    v_fmac_f32 v{20+k}, v{56+i}, v{72+k}")
    P(f"""
    s_lshl_b32 s12, s8, 10
    v_lshlrev_b32 v5, 8, v4
    v_lshl_add_u32 v5, v3, 4, v5
    v_add_u32 v5, s12, v5
    ds_write_b128 v5, v[20:23] offset:{partoff}
""")
    cnt_add(cntoff, 3, 4)
    skip = L("nos2")
    P(f"    s_cmp_eq_u32 s8, 0\n    s_cbranch_scc0 {skip}")
    cnt_wait(cntoff, 4, 3, sleep=0)
    P(f"""
    v_and_b32 v3, 15, v0
    v_lshlrev_b32 v3, 4, v3
    v_lshrrev_b32 v4, 4, v0
    v_lshl_add_u32 v3, v4, 10, v3
    ds_read_b128 v[20:23], v3 offset:{partoff}
    ds_read_b128 v[32:35], v3 offset:{partoff+256}
    ds_read_b128 v[36:39], v3 offset:{partoff+512}
    ds_read_b128 v[40:43], v3 offset:{partoff+768}
    s_waitcnt lgkmcnt(0)""")
    for k in range(4):
        P(f"    v_add_f32 v{20+k}, v{20+k}, v{32+k}\n    v_add_f32 v{36+k}, v{36+k}, v{40+k}")
    for k in range(4):
        P(f"    v_add_f32 v{20+k}, v{20+k}, v{36+k}")
    allreduce_rows4(20, 32)
    tag4(20)
    P(pub_sexpr_code)
    P(f"""
    {EX(0xffff)}
    buffer_store_dwordx4 v[20:23], v2, s[44:47], s11 offen sc1
    s_mov_b64 exec, -1
{skip}:""")
def tags_ready():
    P(f"""
    s_add_u32 s42, s42, 1
    s_and_b32 s64, s42, 0xff
    s_bfe_u32 s65, s42, 0x80008
    s_bfe_u32 s66, s42, 0x80010
    s_lshr_b32 s67, s42, 24
    s_add_u32 s65, s65, s64
    s_add_u32 s66, s66, s64
    s_add_u32 s67, s67, s64
    s_and_b32 s65, s65, 0xff
    s_and_b32 s66, s66, 0xff
    s_and_b32 s67, s67, 0xff""")
def xprep(nafter):
    P(f"""
    v_cmp_gt_u32 vcc, 32, v0
    v_mov_b32 v30, 0
    v_mov_b32 v31, 1.0
    s_nop 0
    v_cndmask_b32 v30, v30, v31, vcc
    s_waitcnt vmcnt({nafter})
""")
    STAMP(1)
    unpack4(24, E); unpack4(26, E + 4)
    P(f"    v_lshlrev_b32 v{E+8}, 16, v28\n    v_and_b32 v{E+9}, 0xffff0000, v28")
def to_loads():
    P(f"""
    s_lshr_b32 s11, s2, 1                 ; rg
    s_lshl_b32 s11, s11, 5
    s_lshl_b32 s12, s15, 2
    s_add_u32 s11, s11, s12
    s_mul_i32 s11, s11, 1152
    s_add_u32 s11, s11, s72               ; + ch*640
    s_mov_b64 exec, s[70:71]
    buffer_load_dwordx4 v[{TORS[0]}:{TORS[0]+3}], v2, s[60:63], s11 offen nt
    buffer_load_dwordx4 v[{TORS[1]}:{TORS[1]+3}], v2, s[60:63], s11 offen offset:1152 nt
    buffer_load_dwordx4 v[{TORS[2]}:{TORS[2]+3}], v2, s[60:63], s11 offen offset:2304 nt
    buffer_load_dwordx4 v[{TORS[3]}:{TORS[3]+3}], v2, s[60:63], s11 offen offset:3456 nt
    s_mov_b64 exec, -1""")

P(f"""; fused decode kernel: LN -> {{q-proj -> sliding-window GQA attention -> o-proj}} + {{LN -> MLP}} + residual
; @launch grid=(256,1,1) block=(1024,1,1) lds={LDS_BYTES}
.amdgcn_target "amdgcn-amd-amdhsa--gfx950"
.text
.globl {NAME}_kernel
.p2align 8
.type {NAME}_kernel,@function
{NAME}_kernel:
    s_cmp_ge_u32 s2, 256
    s_cbranch_scc1 L_end""")
STAMP(0)
P(f"""
    s_load_dwordx16 s[16:31], s[0:1], 0
    s_load_dwordx8 s[32:39], s[0:1], 64
    s_load_dwordx2 s[40:41], s[0:1], 96
    v_lshrrev_b32 v1, 6, v0
    v_and_b32 v0, 63, v0
    v_readfirstlane_b32 s3, v1
    v_lshlrev_b32 v2, 4, v0               ; lane*16
    v_mov_b32 v1, 0xffffff00
    s_lshr_b32 s4, s2, 4                  ; g
    s_and_b32 s5, s2, 15                  ; s
    s_lshr_b32 s6, s2, 1
    s_and_b32 s7, s2, 1                   ; ch
    s_mul_i32 s72, s7, 640
    s_mov_b32 s70, -1
    s_cmp_eq_u32 s7, 0
    s_cselect_b32 s71, 0xff, 0
    s_waitcnt lgkmcnt(0)
    s_load_dword s42, s[40:41], 0
""")
srd(44, 40, 0x40000000)
srd(60, 24, 4718592)
P("""
    s_cmp_ge_u32 s3, 8
    s_cbranch_scc1 L_stream
""")
srd(48, 16, 1152)
P(f"""
    s_and_b32 s8, s3, 3                   ; j
    v_lshlrev_b32 v3, 2, v0
    buffer_load_dwordx4 v[24:27], v2, s[48:51], 0 offen
    buffer_load_dword v28, v3, s[48:51], 0 offen offset:1024
    s_cmp_ge_u32 s3, 4
    s_cbranch_scc1 L_hh
""")
srd(52, 22, 4718592)
P(f"""
    s_lshr_b32 s9, s5, 2                  ; kq
    s_and_b32 s10, s5, 3                  ; cq
    s_mul_i32 s11, s9, 144
    s_mul_i32 s12, s8, 36
    s_add_u32 s73, s11, s12
    s_lshl_b32 s11, s73, 13               ; *8192
    s_lshl_b32 s12, s4, 9
    s_add_u32 s11, s11, s12
    s_lshl_b32 s12, s10, 7
    s_add_u32 s11, s11, s12
""")
nq = tile_dma(52, None, 36, TQ, 8192)
P(f"""
    s_cmp_lg_u32 s3, 0
    s_cbranch_scc1 L_h_noinit
    v_lshlrev_b32 v3, 2, v0
    v_mov_b32 v4, 0
    ds_write_b32 v3, v4
L_h_noinit:
    s_waitcnt lgkmcnt(0)
    s_barrier                             ; B0
""")
tags_ready()
xprep(nq)
layernorm(XN)
P("    s_waitcnt vmcnt(0) lgkmcnt(0)")
tile_gemv(36, TQ, "s73", XN, PQ, C_G1, f"""
    s_lshr_b32 s11, s5, 2
    s_lshl_b32 s11, s11, 14               ; kq*16384
    s_lshl_b32 s12, s4, 10                ; 256g*4
    s_add_u32 s11, s11, s12
    s_and_b32 s12, s5, 3
    s_lshl_b32 s12, s12, 8                ; 64cq*4
    s_add_u32 s11, s11, s12
    s_add_u32 s11, s11, {QP_OFF}""")
STAMP(2)
lp = L("h1poll"); ld = L("h1done")
P(f"""
    s_lshl_b32 s11, s4, 10
    s_lshl_b32 s12, s8, 8
    s_add_u32 s11, s11, s12
    s_add_u32 s11, s11, {QP_OFF}
    v_lshrrev_b32 v4, 4, v0
    v_lshlrev_b32 v4, 14, v4
    v_and_b32 v5, 15, v0
    v_lshl_add_u32 v4, v5, 4, v4
""")
if LAZY: cnt_wait(C_KI, 8, 3)
pipe_poll("h1p", lambda b: P(f"    buffer_load_dwordx4 v[{b}:{b+3}], v4, s[44:47], s11 offen sc1"), 1, [48 + 4 * i for i in range(NB)], 32, 40)
untag4(32)
allreduce_rows4(32, 36)
P(f"""
    v_cvt_pk_bf16_f32 v32, v32, v33
    v_cvt_pk_bf16_f32 v33, v34, v35
    v_lshlrev_b32 v5, 3, v5
    s_lshl_b32 s12, s8, 7
    v_add_u32 v5, s12, v5
    {EX(0xffff)}
    ds_write_b64 v5, v[32:33] offset:{QL}
    s_mov_b64 exec, -1
""")
cnt_add(C_Q, 3, 4)
STAMP(3)
P("""
    s_cmp_eq_u32 s8, 1
    s_cbranch_scc0 L_hq_noml
""")
cnt_wait(C_L, 8, 3, sleep=SLP)
P(f"""
    s_waitcnt vmcnt(0)
    v_lshrrev_b32 v4, 5, v0
    v_lshlrev_b32 v4, 5, v4               ; head*32
    ds_read_b128 v[48:51], v4 offset:{WL}
    ds_read_b128 v[52:55], v4 offset:{WL+16}
    ds_read_b128 v[56:59], v4 offset:{WM}
    ds_read_b128 v[60:63], v4 offset:{WM+16}
    s_waitcnt lgkmcnt(0)
    v_add_f32 v13, v48, v49
    v_add_f32 v14, v50, v51
    v_add_f32 v15, v52, v53
    v_add_f32 v13, v13, v14
    v_add_f32 v14, v54, v55
    v_add_f32 v13, v13, v15
    v_add_f32 v13, v13, v14
    v_max3_f32 v12, v56, v57, v58
    v_max3_f32 v12, v12, v59, v60
    v_max3_f32 v12, v12, v61, v62
    v_max_f32 v12, v12, v63
    v_mov_b32 v14, 0
    v_mov_b32 v15, 0
""")
tag4(12)
P(f"""
    v_lshlrev_b32 v4, 3, v4               ; head*256
    s_lshl_b32 s12, s4, 9
    s_lshl_b32 s13, s5, 4
    s_add_u32 s12, s12, s13
    s_add_u32 s12, s12, {OPM_OFF}
    {EX(0x100000001)}
    buffer_store_dwordx4 v[12:15], v4, s[44:47], s12 offen sc1
    s_mov_b64 exec, -1
L_hq_noml:
    s_cmp_eq_u32 s8, 0
    s_cbranch_scc0 L_done
""")
lp = L("h2poll"); ld = L("h2done")
P(f"""
    s_lshl_b32 s12, s6, 11
    s_add_u32 s12, s12, {OPD_OFF}
    s_lshr_b32 s13, s6, 2
    s_lshl_b32 s13, s13, 8
    s_add_u32 s13, s13, {OPM_OFF}
    v_lshrrev_b32 v3, 3, v0
    v_lshlrev_b32 v3, 4, v3               ; s_sub*16
    v_lshrrev_b32 v5, 4, v0
    v_and_b32 v6, 1, v5
    v_lshrrev_b32 v5, 1, v5
    v_lshl_add_u32 v5, v6, 1, v5
    v_and_b32 v6, 7, v0
    v_lshl_add_u32 v5, v6, 2, v5
    v_lshlrev_b32 v5, 2, v5
    s_mov_b32 s10, 0x3fb8aa3b
""")
cnt_wait(C_PV, 8, 7, sleep=1)
STAMP(4)
P(f"""
    s_mov_b32 s79, {SPIN}
{lp}:
    buffer_load_dwordx4 v[24:27], v3, s[44:47], s13 offen sc1
    buffer_load_dwordx4 v[28:31], v3, s[44:47], s13 offen offset:128 sc1
    buffer_load_dwordx4 v[16:19], v2, s[44:47], s12 offen sc1
    buffer_load_dwordx4 v[20:23], v2, s[44:47], s12 offen offset:1024 sc1
    s_waitcnt vmcnt(0)""")
check([16, 20, 24, 28], 32, ld)
polltail(lp, 0)
P(f"{ld}:")
STAMP(5)
P(f"""
    v_and_b32 v24, v1, v24
    v_and_b32 v28, v1, v28
    v_max_f32 v32, v24, v28
    v_and_b32 v25, v1, v25
    v_and_b32 v29, v1, v29
    v_max_f32_dpp v32, v32, v32 row_ror:8 row_mask:0xf bank_mask:0xf
    v_mov_b32 v33, v32
    v_and_b32 v16, v1, v16
    v_and_b32 v17, v1, v17
    v_permlane16_swap_b32 v32, v33
    v_max_f32 v32, v32, v33
    v_mov_b32 v33, v32
    v_and_b32 v18, v1, v18
    v_and_b32 v19, v1, v19
    v_permlane32_swap_b32 v32, v33
    v_max_f32 v32, v32, v33               ; global M
    v_sub_f32 v24, v24, v32
    v_sub_f32 v28, v28, v32
    v_mul_f32 v24, s10, v24
    v_mul_f32 v28, s10, v28
    v_exp_f32 v24, v24
    v_exp_f32 v28, v28
    v_and_b32 v20, v1, v20
    v_and_b32 v21, v1, v21
    v_and_b32 v22, v1, v22
    v_and_b32 v23, v1, v23
    v_mul_f32 v34, v24, v25
    v_fmac_f32 v34, v28, v29              ; L part
""")
for k in range(4):
    P(f"    v_mul_f32 v{16+k}, v24, v{16+k}\n    v_fmac_f32 v{16+k}, v28, v{20+k}")
P(f"""
    v_add_f32_dpp v34, v34, v34 row_ror:8 row_mask:0xf bank_mask:0xf
    v_permlane32_swap_b32 v16, v17
    v_permlane32_swap_b32 v18, v19
    v_mov_b32 v35, v34
    v_add_f32 v16, v16, v17
    v_add_f32 v18, v18, v19
    v_permlane16_swap_b32 v34, v35
    v_add_f32 v34, v34, v35
    v_permlane16_swap_b32 v16, v18
    v_mov_b32 v35, v34
    v_add_f32 v16, v16, v18
    s_nop 0
    v_permlane32_swap_b32 v34, v35
    v_add_f32 v34, v34, v35               ; L
    v_add_f32_dpp v16, v16, v16 row_ror:8 row_mask:0xf bank_mask:0xf
    v_rcp_f32 v35, v34
    s_nop 0
    v_mul_f32 v20, v16, v35
    v_fma_f32 v21, -v20, v34, v16
    v_fma_f32 v16, v21, v35, v20
    v_cvt_pk_bf16_f32 v16, v16, v16
    v_lshlrev_b32 v16, 16, v16
    s_mov_b32 s14, 0x00ff00ff
    s_mov_b32 s15, 0x00ff00ff
    s_mov_b64 exec, s[14:15]
    ds_write_b32 v5, v16 offset:{OL}
    s_mov_b64 exec, -1
""")
cnt_add(C_O, 3, 4)
P("    s_branch L_done")
P("L_hh:")
srd(56, 28, 5308416)
srd(64+4, 32, 5308416)
out.pop(); out.pop(); out.pop(); out.pop()
srd(52, 32, 5308416)
srd(76-20, 28, 5308416)
P(f"""
    s_mov_b32 s75, 0
    s_cmp_ge_u32 s2, 216
    s_cbranch_scc1 L_hh_noth0
    s_mul_i32 s9, s2, 43691
    s_lshr_b32 s9, s9, 17                 ; cg = b/3
    s_mul_i32 s10, s9, 3
    s_sub_u32 s10, s2, s10                ; kq' = b%3
    s_mul_i32 s11, s10, 192
    s_mul_i32 s12, s8, 48
    s_add_u32 s73, s11, s12
    s_mul_i32 s11, s73, 9216
    s_lshl_b32 s12, s9, 7
    s_add_u32 s11, s11, s12
""")
nh = tile_dma(56, None, 48, TH, 9216)
P("L_hh_noth0:")
TMR = 84
P(f"""
    s_mul_i32 s11, s6, 36
    s_mul_i32 s12, s8, 9
    s_add_u32 s11, s11, s12
    s_mul_i32 s11, s11, 1152
    s_add_u32 s74, s11, s72
    s_waitcnt lgkmcnt(0)
    s_barrier                             ; B0
""")
tags_ready()
P("""
    s_cmp_ge_u32 s2, 216
    s_cbranch_scc1 L_hh_x2
""")
P(f"    s_waitcnt vmcnt({nh})\n    s_branch L_hh_x3\nL_hh_x2:\n    s_waitcnt vmcnt(0)\nL_hh_x3:")
xprep(63)
layernorm(None)
layernorm(Y)
P("""
    s_cmp_ge_u32 s2, 216
    s_cbranch_scc1 L_hh_noth1
    s_waitcnt vmcnt(0) lgkmcnt(0)
""")
tile_gemv(48, TH, "s73", Y, PH, C_G2, f"""
    s_mul_i32 s9, s2, 43691
    s_lshr_b32 s9, s9, 17                 ; cg
    s_mul_i32 s10, s9, 3
    s_sub_u32 s10, s2, s10                ; kq'
    s_mul_i32 s11, s10, 18432
    s_lshl_b32 s12, s9, 8
    s_add_u32 s11, s11, s12
    s_add_u32 s11, s11, {HP_OFF}""")
P("L_hh_noth1:")
STAMP(2)
lp = L("hhpoll"); ld = L("hhdone")
srd(56, 30, 9216)
P(f"""
    s_cmp_eq_u32 s8, 0
    s_cbranch_scc0 L_hh_nopoll
    s_mul_i32 s11, s6, 144
    s_add_u32 s11, s11, {HP_OFF}
    v_lshrrev_b32 v4, 4, v0
    s_mov_b32 s14, 18432
    v_mul_lo_u32 v4, v4, s14
    v_and_b32 v5, 15, v0
    v_lshl_add_u32 v4, v5, 4, v4
    v_lshlrev_b32 v6, 3, v5
    s_mul_i32 s13, s6, 72
    v_mov_b32 v32, 0
    v_mov_b32 v33, 0
    v_mov_b32 v34, 0
    v_mov_b32 v35, 0
    {EX(0x1ff)}
    buffer_load_dwordx2 v[44:45], v6, s[56:59], s13 offen
    {EX(0x01ff01ff01ff)}
    s_mov_b32 s79, {SPIN}
{lp}:
    buffer_load_dwordx4 v[32:35], v4, s[44:47], s11 offen sc1
    s_waitcnt vmcnt(0)""")
check([32], 40, ld)
polltail(lp, HSLP)
P(f"{ld}:\n    s_mov_b64 exec, -1")
untag4(32)
allreduce_rows4(32, 36)
bf16r2(32, 33, 40); bf16r2(34, 35, 40)
unpack4(44, 36)
for k in range(4):
    P(f"    v_add_f32 v{32+k}, v{32+k}, v{36+k}")
bf16r2(32, 33, 40); bf16r2(34, 35, 40)
P("    s_mov_b32 s12, 0x3d372713             ; 0.044715\n    s_mov_b32 s13, 0x40135761             ; 2*0.7978845608*log2(e)")
for k in range(4):
    x, t = 32 + k, 36 + k
    P(f"""
    v_mul_f32 v{t}, v{x}, v{x}
    v_mul_f32 v{t}, v{t}, v{x}
    v_fma_f32 v{t}, v{t}, s12, v{x}
    v_mul_f32 v{t}, s13, v{t}
    v_exp_f32 v{t}, v{t}
    s_nop 0
    v_add_f32 v{t}, 1.0, v{t}
    v_rcp_f32 v{t}, v{t}
    s_nop 0
    v_fma_f32 v{x}, -v{t}, v{x}, v{x}""")
bf16r2(32, 33, 40); bf16r2(34, 35, 40)
P(f"""
    v_lshlrev_b32 v5, 4, v5
    {EX(0x1ff)}
    ds_write_b128 v5, v[32:35] offset:{HL}
    s_mov_b64 exec, -1
""")
cnt_add(C_H, 3, 4)
P("L_hh_nopoll:")
cnt_wait(C_H, 1, 3, sleep=2*SLP)
STAMP(4)
cnt_wait(C_PV if TMLATE else C_VI, 8, 3, sleep=SLP)
P("    s_mov_b64 exec, s[70:71]")
for i in range(9):
    if i >= HPACE:
        P(f"    s_waitcnt vmcnt({HPACE-1})")
    P(f"    buffer_load_dwordx4 v[{TMR+4*i}:{TMR+4*i+3}], v2, s[52:55], s74 offen nt\n    s_add_u32 s74, s74, 1152")
P("    s_mov_b64 exec, -1")
STAMP(3)

P(f"""
    s_mul_i32 s12, s8, 36
    v_mov_b32 v3, s12
""")
for i in range(9):
    P(f"    ds_read_b32 v{32+i}, v3 offset:{HL+4*i}")
for k in range(8):
    P(f"    v_mov_b32 v{16+k}, 0")
P("    s_waitcnt vmcnt(0) lgkmcnt(0)")
for i in range(9):
    unpack4(TMR + 4 * i, 72); unpack4(TMR + 4 * i + 2, 76)
    for k in range(8):
        P(f"    v_fmac_f32 v{16+k}, v{32+i}, v{72+k}")
P(f"""
    s_mul_i32 s12, s8, 1280
    v_lshlrev_b32 v3, 5, v0
    v_add_u32 v3, s12, v3
    s_mov_b64 exec, s[70:71]
    ds_write_b128 v3, v[16:19] offset:{PBP}
    ds_write_b128 v3, v[20:23] offset:{PBP+16}
    s_mov_b64 exec, -1
""")
cnt_add(C_G3, 3, 4)
P("    s_cmp_eq_u32 s8, 1\n    s_cbranch_scc0 L_hh_nob")
cnt_wait(C_G3, 4, 3, sleep=0)
P("    v_lshlrev_b32 v3, 5, v0\n    s_mov_b64 exec, s[70:71]")
for w in range(4):
    P(f"    ds_read_b128 v[{32+8*w}:{35+8*w}], v3 offset:{PBP+1280*w}\n    ds_read_b128 v[{36+8*w}:{39+8*w}], v3 offset:{PBP+1280*w+16}")
P("    s_waitcnt lgkmcnt(0)")
for k in range(8):
    P(f"    v_add_f32 v{32+k}, v{32+k}, v{40+k}\n    v_add_f32 v{48+k}, v{48+k}, v{56+k}")
for k in range(8):
    P(f"    v_add_f32 v{32+k}, v{32+k}, v{48+k}")
tag4(32); tag4(36)
P(f"""
    s_mul_i32 s11, s6, 2304
    s_lshl_b32 s12, s72, 1                ; ch*1280
    s_add_u32 s11, s11, s12
    s_add_u32 s11, s11, {FPB_OFF}
    buffer_store_dwordx4 v[32:35], v3, s[44:47], s11 offen sc1
    buffer_store_dwordx4 v[36:39], v3, s[44:47], s11 offen offset:16 sc1
    s_mov_b64 exec, -1
L_hh_nob:
""")
STAMP(5)
lp = L("bpoll"); ld = L("bdone")
P(f"""
    s_cmp_lt_u32 s2, {RED0}
    s_cbranch_scc1 L_done
    s_sub_u32 s9, s2, {RED0}              ; k
    v_lshrrev_b32 v3, 3, v0
    s_mov_b32 s14, 2304
    v_mul_lo_u32 v3, v3, s14
    v_and_b32 v4, 7, v0
    v_lshl_add_u32 v3, v4, 4, v3
    s_mul_i32 s11, s8, {32*2304}
    s_lshl_b32 s12, s9, 7
    s_add_u32 s11, s11, s12
    s_add_u32 s11, s11, {FPB_OFF}
    s_add_u32 s12, s11, {8*2304}
    s_add_u32 s13, s11, {16*2304}
    s_add_u32 s14, s11, {24*2304}
    s_mov_b32 s79, {SPIN}
{lp}:
    buffer_load_dwordx4 v[8:11], v3, s[44:47], s11 offen sc1
    buffer_load_dwordx4 v[12:15], v3, s[44:47], s12 offen sc1
    buffer_load_dwordx4 v[16:19], v3, s[44:47], s13 offen sc1
    buffer_load_dwordx4 v[20:23], v3, s[44:47], s14 offen sc1
    s_waitcnt vmcnt(0)""")
check([8, 12, 16, 20], 32, ld)
polltail(lp, BSLP)
P(f"{ld}:")
untag4(8); untag4(12); untag4(16); untag4(20)
for k in range(4):
    P(f"    v_add_f32 v{8+k}, v{8+k}, v{12+k}\n    v_add_f32 v{16+k}, v{16+k}, v{20+k}")
for k in range(4):
    P(f"    v_add_f32 v{8+k}, v{8+k}, v{16+k}")
P(f"""
    s_nop 1
    v_permlane32_swap_b32 v8, v9
    v_permlane32_swap_b32 v10, v11
    v_add_f32 v8, v8, v9
    v_add_f32 v10, v10, v11
    s_nop 1
    v_permlane16_swap_b32 v8, v10
    v_add_f32 v8, v8, v10
    s_nop 1
    v_add_f32_dpp v8, v8, v8 row_ror:8 row_mask:0xf bank_mask:0xf
    v_lshrrev_b32 v5, 4, v0
    v_and_b32 v6, 1, v5
    v_lshrrev_b32 v5, 1, v5
    v_lshl_add_u32 v5, v6, 1, v5
    v_lshl_add_u32 v5, v4, 2, v5
    v_lshlrev_b32 v5, 2, v5
    s_lshl_b32 s14, s8, 7
    v_add_u32 v5, s14, v5
    s_mov_b32 s14, 0x00ff00ff
    s_mov_b32 s15, 0x00ff00ff
    s_mov_b64 exec, s[14:15]
    ds_write_b32 v5, v8 offset:{RB}
    s_mov_b64 exec, -1
""")
cnt_add(C_RB, 3, 4)
P("    s_branch L_done")

KR, VR, Q0, Q1, X, A0, A1 = 8, 40, 72, 76, 80, 96, 104
P("L_stream:")
if PRIO: P("    s_setprio 3")
srd(48, 18, 0x10000000)
srd(52, 20, 0x10000000)
P(f"""
    s_sub_u32 s15, s3, 8                  ; w
    s_lshl_b32 s8, s4, 24
    s_lshl_b32 s9, s5, 16
    s_add_u32 s8, s8, s9
    s_add_u32 s8, s8, 0xF00000
    s_lshl_b32 s9, s15, 10
    s_add_u32 s8, s8, s9
    s_add_u32 s9, s8, 4096
""")
def kvload(srdn, base, i):
    P(f"    s_add_u32 s9, s8, {8192*i}\n    buffer_load_dwordx4 v[{base+4*i}:{base+4*i+3}], v2, s[{srdn}:{srdn+3}], s9 offen nt")
seq = [(48, KR, i) for i in range(8)] + [(52, VR, i) for i in range(8)]
for n in range(SPRE): kvload(*seq[n])
P("""
    s_waitcnt lgkmcnt(0)
    s_barrier                             ; B0
""")
for n in range(SPRE, PACE): kvload(*seq[n])
tags_ready()
nxt = [PACE]
def issue_next():
    n = nxt[0]
    if n >= 16: return
    P(f"    s_waitcnt vmcnt({(PACE if n < 8 else PACE2)-1})")
    kvload(*seq[n])
    if n == TOAT: to_loads()
    if n == 7: cnt_add(C_KI, 3, 4)
    if n == VT: cnt_add(C_VI, 3, 4)
    nxt[0] += 1
P("    s_mov_b32 s77, 0")
while nxt[0] < 16:
    issue_next()
    n = nxt[0] - 1
    if n >= 8 + max(PACE, PACE2) - 1 and n < 15:
        sk = L("sk")
        P(f"""
    s_cmp_lg_u32 s77, 0
    s_cbranch_scc1 {sk}
    v_mov_b32 v3, {C_Q}
    ds_read_b32 v3, v3
    s_waitcnt lgkmcnt(0)
    v_readfirstlane_b32 s78, v3
    s_cmp_ge_u32 s78, 4
    s_cbranch_scc0 {sk}
    s_call_b64 s[74:75], L_scores
{sk}:""")
STAMP(1)
P("""
    s_cmp_lg_u32 s77, 0
    s_cbranch_scc1 L_s_scored
""")
cnt_wait(C_Q, 4, 3)
P("""
    s_call_b64 s[74:75], L_scores
L_s_scored:
""")
if not TOLATE and TOAT < 0: to_loads()
for j in range(4):
    P(f"    v_mov_b32 v{A0+j}, 0")
P(f"""
    v_lshrrev_b32 v3, 5, v0
    v_lshlrev_b32 v3, 9, v3
    v_and_b32 v4, 15, v0
    v_lshl_add_u32 v3, v4, 5, v3
    v_and_b32 v4, 16, v0
    v_add_u32 v3, v3, v4
    s_lshl_b32 s11, s15, 10
    v_add_u32 v118, s11, v3
""")
for i in range(8):
    P(f"    s_waitcnt vmcnt({7-i+(4 if (TOAT >= 8+i or (TOAT < 0 and not TOLATE)) else 0)})")
    P(f"    v_mfma_f32_16x16x32_bf16 v[{A0}:{A0+3}], v[{KR+4*i}:{KR+4*i+3}], v[{VR+4*i}:{VR+4*i+3}], v[{A0}:{A0+3}]")
STAMP(3)
P(f"""
    s_nop 7
    s_nop 1
    ds_write_b128 v118, v[{A0}:{A0+3}] offset:{PV}
""")

cnt_add(C_PV, 3, 4)
if TOLATE and TOAT < 0: to_loads()
P(f"""
    s_cmp_lg_u32 s15, 0
    s_cbranch_scc1 L_s_w0skip
""")
cnt_wait(C_PV, 8, 3, sleep=0)
for w in range(8):
    P(f"    ds_read_b128 v[{8+4*w}:{11+4*w}], v2 offset:{PV+1024*w}")
P(f"""
    v_lshrrev_b32 v5, 3, v0
    v_lshlrev_b32 v5, 11, v5
    v_and_b32 v6, 7, v0
    v_lshl_add_u32 v5, v6, 4, v5
    s_lshl_b32 s12, s4, 14
    s_lshl_b32 s13, s5, 7
    s_add_u32 s12, s12, s13
    s_add_u32 s12, s12, {OPD_OFF}
    s_waitcnt lgkmcnt(0)
""")
for k in range(4):
    P(f"    v_add_f32 v{8+k}, v{8+k}, v{12+k}\n    v_add_f32 v{16+k}, v{16+k}, v{20+k}\n    v_add_f32 v{24+k}, v{24+k}, v{28+k}\n    v_add_f32 v{32+k}, v{32+k}, v{36+k}")
for k in range(4):
    P(f"    v_add_f32 v{8+k}, v{8+k}, v{16+k}\n    v_add_f32 v{24+k}, v{24+k}, v{32+k}")
for k in range(4):
    P(f"    v_add_f32 v{8+k}, v{8+k}, v{24+k}")
tag4(8)
P(f"""
    buffer_store_dwordx4 v[8:11], v5, s[44:47], s12 offen sc1
""")
STAMP(4)
P(f"""
    s_waitcnt vmcnt(1)
    s_branch L_s_tail
L_s_w0skip:
    s_waitcnt vmcnt(0)
L_s_tail:
""")
for r in range(4):
    unpack4(TORS[r], 8 + 8 * r); unpack4(TORS[r] + 2, 12 + 8 * r)
P(f"""
    s_lshl_b32 s11, s15, 4
    v_mov_b32 v40, s11
    s_mul_i32 s11, s15, 1280
    v_lshlrev_b32 v41, 5, v0
    v_add_u32 v41, s11, v41
""")
cnt_wait(C_O, 1, 3, sleep=0)
P(f"""
    ds_read_b128 v[4:7], v40 offset:{OL}
    s_waitcnt lgkmcnt(0)""")
for k in range(8):
    P(f"    v_mul_f32 v{8+k}, v4, v{8+k}\n    v_fmac_f32 v{8+k}, v5, v{16+k}\n    v_fmac_f32 v{8+k}, v6, v{24+k}\n    v_fmac_f32 v{8+k}, v7, v{32+k}")
P(f"""
    s_mov_b64 exec, s[70:71]
    ds_write_b128 v41, v[8:11] offset:{PA}
    ds_write_b128 v41, v[12:15] offset:{PA+16}
    s_mov_b64 exec, -1
""")
cnt_add(C_PA, 3, 4)
P(f"""
    s_cmp_ge_u32 s15, 5
    s_cbranch_scc1 L_f_nos2
    s_cmp_eq_u32 s15, 4
    s_cselect_b32 s12, s7, 0
    s_cmp_lg_u32 s12, 0
    s_cbranch_scc1 L_f_nos2
    s_lshl_b32 s11, s15, 6
    v_add_u32 v3, s11, v0                 ; t
    v_lshrrev_b32 v4, 2, v3               ; quad
    v_and_b32 v5, 3, v3
    v_mul_u32_u24 v5, {2*1280}, v5
    v_lshl_add_u32 v5, v4, 4, v5
    v_lshlrev_b32 v4, 4, v4               ; quad*16
    s_mul_i32 s11, s6, 2304
    s_lshl_b32 s12, s72, 1
    s_add_u32 s11, s11, s12
    s_add_u32 s11, s11, {FPA_OFF}
""")
cnt_wait(C_PA, 8, 3, sleep=0)
P(f"""
    ds_read_b128 v[8:11], v5 offset:{PA}
    ds_read_b128 v[12:15], v5 offset:{PA+1280}
    s_waitcnt lgkmcnt(0)
""")
for k in range(4):
    P(f"    v_add_f32 v{8+k}, v{8+k}, v{12+k}")
P("    s_nop 0")
for k in range(4):
    P(f"    v_add_f32_dpp v{8+k}, v{8+k}, v{8+k} quad_perm:[1,0,3,2] row_mask:0xf bank_mask:0xf")
for k in range(4):
    P(f"    v_add_f32_dpp v{8+k}, v{8+k}, v{8+k} quad_perm:[2,3,0,1] row_mask:0xf bank_mask:0xf")
tag4(8)
P(f"""
    s_mov_b32 s12, 0x11111111
    s_mov_b32 s13, 0x11111111
    s_mov_b64 exec, s[12:13]
    buffer_store_dwordx4 v[8:11], v4, s[44:47], s11 offen sc1
    s_mov_b64 exec, -1
L_f_nos2:
""")
STAMP(6)
P(f"""
    s_cmp_lt_u32 s2, {RED0}
    s_cbranch_scc1 L_done
    s_sub_u32 s8, s2, {RED0}              ; k: columns 32k..32k+31
    v_lshrrev_b32 v3, 3, v0
    s_mov_b32 s14, 2304
    v_mul_lo_u32 v3, v3, s14
    v_and_b32 v4, 7, v0
    v_lshl_add_u32 v3, v4, 4, v3
    s_mul_i32 s11, s15, {16*2304}
    s_lshl_b32 s12, s8, 7
    s_add_u32 s11, s11, s12
    s_add_u32 s11, s11, {FPA_OFF}
    s_add_u32 s12, s11, {8*2304}
""")
srd(48, 16, 1152)
srd(52, 34, 1152)
srd(56, 36, 1152)
lp = L("h3poll"); ld = L("h3done")
P(f"""
    s_lshl_b32 s13, s8, 6
    v_lshlrev_b32 v6, 1, v0
    buffer_load_ushort v40, v6, s[48:51], s13 offen
    buffer_load_ushort v41, v6, s[52:55], s13 offen
    v_lshrrev_b32 v5, 4, v0
    v_and_b32 v6, 1, v5
    v_lshrrev_b32 v5, 1, v5
    v_lshl_add_u32 v5, v6, 1, v5
    v_lshl_add_u32 v5, v4, 2, v5          ; column 0..31
    v_lshlrev_b32 v5, 2, v5
    s_lshl_b32 s14, s15, 7
    v_add_u32 v5, s14, v5
    s_mov_b32 s79, {SPIN}
{lp}:
    buffer_load_dwordx4 v[8:11], v3, s[44:47], s11 offen sc1
    buffer_load_dwordx4 v[12:15], v3, s[44:47], s12 offen sc1
    s_waitcnt vmcnt(0)""")
check([8, 12], 16, ld)
polltail(lp, 0)
P(f"{ld}:")
untag4(8); untag4(12)
for k in range(4):
    P(f"    v_add_f32 v{8+k}, v{8+k}, v{12+k}")
P(f"""
    s_nop 1
    v_permlane32_swap_b32 v8, v9
    v_permlane32_swap_b32 v10, v11
    v_add_f32 v8, v8, v9
    v_add_f32 v10, v10, v11
    s_nop 1
    v_permlane16_swap_b32 v8, v10
    v_add_f32 v8, v8, v10
    s_nop 1
    v_add_f32_dpp v8, v8, v8 row_ror:8 row_mask:0xf bank_mask:0xf
    s_mov_b32 s10, 0x00ff00ff
    s_mov_b32 s11, 0x00ff00ff
    s_mov_b64 exec, s[10:11]
    ds_write_b32 v5, v8 offset:{RA}
    s_mov_b64 exec, -1
""")
cnt_add(C_RA, 3, 4)
P(f"""
    s_cmp_lg_u32 s15, 0
    s_cbranch_scc1 L_done
""")
cnt_wait(C_RB, 4, 3, sleep=0)
cnt_wait(C_RA, 8, 3, sleep=0)
P(f"""
    v_lshlrev_b32 v3, 2, v0
    v_and_b32 v3, 0x7f, v3
""")
for w in range(8):
    P(f"    ds_read_b32 v{8+w}, v3 offset:{RA+128*w}")
for w in range(4):
    P(f"    ds_read_b32 v{24+w}, v3 offset:{RB+128*w}")
P("    s_waitcnt lgkmcnt(0)")
for k in range(4):
    P(f"    v_add_f32 v{8+k}, v{8+k}, v{12+k}")
P("    v_add_f32 v24, v24, v25\n    v_add_f32 v26, v26, v27")
for k in range(2):
    P(f"    v_add_f32 v{8+k}, v{8+k}, v{10+k}")
P("    v_add_f32 v24, v24, v26\n    v_add_f32 v8, v8, v9")
bf16r2(8, 24, 4)
P("""
    v_lshlrev_b32 v40, 16, v40
    v_lshlrev_b32 v41, 16, v41
    v_add_f32 v8, v40, v8
    v_add_f32 v24, v24, v41
""")
bf16r2(8, 24, 4)
P(f"""
    v_add_f32 v8, v8, v24
    v_cvt_pk_bf16_f32 v8, v8, v8
    v_lshlrev_b32 v6, 1, v0
    {EX(0xffffffff)}
    buffer_store_short v8, v6, s[56:59], s13 offen
    s_mov_b64 exec, -1
    s_cmp_lg_u32 s8, 0
    s_cbranch_scc1 L_done
    v_mov_b32 v32, s42
    v_mov_b32 v34, 0
    s_mov_b64 exec, 1
    buffer_store_dword v32, v34, s[44:47], 0 offen
    s_mov_b64 exec, -1
L_done:
""")
STAMP(7)
if STAMPS:
    P(f"""
    s_waitcnt lgkmcnt(0)
    s_lshl_b32 s11, s2, 4
    s_add_u32 s11, s11, s3
    s_lshl_b32 s11, s11, 6
    s_add_u32 s11, s11, {STAMP_OFF}
    v_mov_b32 v3, 0
    s_mov_b64 exec, 1
""")
    for q in range(4):
        for k in range(4):
            P(f"    v_mov_b32 v{32+k}, s{84+4*q+k}")
        P(f"    buffer_store_dwordx4 v[32:35], v3, s[44:47], s11 offen offset:{16*q}\n    s_nop 1")
    P("    s_mov_b64 exec, -1")
P("    s_branch L_end\nL_scores:")
STAMP(2)
P(f"""
    v_and_b32 v3, 15, v0
    v_lshlrev_b32 v3, 4, v3
    ds_read_b128 v[{Q0}:{Q0+3}], v3 offset:{QL}
    ds_read_b128 v[{Q1}:{Q1+3}], v3 offset:{QL+256}
    s_waitcnt lgkmcnt(0)
""")
for i in range(8):
    k = KR + 4 * i
    P(f"""
    v_dot2_f32_bf16 v{X+i}, v{k}, v{Q0}, 0
    v_dot2_f32_bf16 v{X+8+i}, v{k}, v{Q1}, 0
    v_dot2_f32_bf16 v{X+i}, v{k+1}, v{Q0+1}, v{X+i}
    v_dot2_f32_bf16 v{X+8+i}, v{k+1}, v{Q1+1}, v{X+8+i}
    v_dot2_f32_bf16 v{X+i}, v{k+2}, v{Q0+2}, v{X+i}
    v_dot2_f32_bf16 v{X+8+i}, v{k+2}, v{Q1+2}, v{X+8+i}
    v_dot2_f32_bf16 v{X+i}, v{k+3}, v{Q0+3}, v{X+i}
    v_dot2_f32_bf16 v{X+8+i}, v{k+3}, v{Q1+3}, v{X+8+i}""")
P("    s_nop 3")
for v in range(8):
    P(f"    v_add_f32_dpp v{X+v}, v{X+v}, v{X+v} row_ror:8 row_mask:0xf bank_mask:0xf")
    P(f"    v_add_f32_dpp v{X+v}, v{X+v+8}, v{X+v+8} row_ror:8 row_mask:0xf bank_mask:0xc")
for v in range(4):
    P(f"    v_add_f32_dpp v{X+v}, v{X+v}, v{X+v} row_half_mirror row_mask:0xf bank_mask:0xf")
    P(f"    v_add_f32_dpp v{X+v}, v{X+v+4}, v{X+v+4} row_half_mirror row_mask:0xf bank_mask:0xa")
P(f"""
    s_mov_b32 s12, 0xcccccccc
    s_mov_b32 s13, 0xcccccccc
    s_mov_b32 s10, 0xaaaaaaaa
    s_mov_b32 s11, 0xaaaaaaaa
    v_add_f32_dpp v{X+8}, v{X}, v{X} quad_perm:[2,3,0,1] row_mask:0xf bank_mask:0xf
    v_add_f32_dpp v{X+9}, v{X+2}, v{X+2} quad_perm:[2,3,0,1] row_mask:0xf bank_mask:0xf
    v_add_f32_dpp v{X+10}, v{X+1}, v{X+1} quad_perm:[2,3,0,1] row_mask:0xf bank_mask:0xf
    v_add_f32_dpp v{X+11}, v{X+3}, v{X+3} quad_perm:[2,3,0,1] row_mask:0xf bank_mask:0xf
    v_cndmask_b32 v{X}, v{X+8}, v{X+9}, s[12:13]
    v_cndmask_b32 v{X+1}, v{X+10}, v{X+11}, s[12:13]
    s_nop 1
    v_add_f32_dpp v{X+8}, v{X}, v{X} quad_perm:[1,0,3,2] row_mask:0xf bank_mask:0xf
    v_add_f32_dpp v{X+9}, v{X+1}, v{X+1} quad_perm:[1,0,3,2] row_mask:0xf bank_mask:0xf
    v_cndmask_b32 v{X}, v{X+8}, v{X+9}, s[10:11]
""")
R = X
bf16r1(R)
P(f"    s_mov_b32 s10, 0x3db504f3          ; 128^-0.5\n    v_mul_f32 v{R}, s10, v{R}")
bf16r1(R)
def head_allreduce(op, v, t):
    P(f"""
    s_nop 1
    {op}_dpp v{v}, v{v}, v{v} quad_perm:[1,0,3,2] row_mask:0xf bank_mask:0xf
    s_nop 1
    {op}_dpp v{v}, v{v}, v{v} quad_perm:[2,3,0,1] row_mask:0xf bank_mask:0xf
    s_nop 1
    {op}_dpp v{v}, v{v}, v{v} row_half_mirror row_mask:0xf bank_mask:0xf
    v_mov_b32 v{t}, v{v}
    s_nop 1
    v_permlane16_swap_b32 v{v}, v{t}
    {op} v{v}, v{v}, v{t}
    v_mov_b32 v{t}, v{v}
    s_nop 1
    v_permlane32_swap_b32 v{v}, v{t}
    {op} v{v}, v{v}, v{t}""")
P(f"    v_mov_b32 v4, v{R}")
head_allreduce("v_max_f32", 4, 5)
P(f"""
    v_and_b32 v6, 8, v0
    v_lshlrev_b32 v6, 2, v6               ; head*32
    s_lshl_b32 s11, s15, 2
    v_add_u32 v3, s11, v6
    {EX(0x101)}
    ds_write_b32 v3, v4 offset:{WM}
    s_mov_b64 exec, -1
""")
cnt_add(C_M, 3, 5)
cnt_wait(C_M, 8, 3, sleep=0)
P(f"""
    ds_read_b128 v[112:115], v6 offset:{WM}
    ds_read_b128 v[116:119], v6 offset:{WM+16}
    s_waitcnt lgkmcnt(0)
    v_max3_f32 v4, v112, v113, v114
    v_max3_f32 v4, v4, v115, v116
    v_max3_f32 v4, v4, v117, v118
    v_max_f32 v4, v4, v119
    s_mov_b32 s10, 0x3fb8aa3b          ; log2(e)
    v_sub_f32 v{R}, v{R}, v4
    v_mul_f32 v{R}, s10, v{R}
    v_exp_f32 v{R}, v{R}
    s_nop 0
    v_mov_b32 v4, v{R}
""")
head_allreduce("v_add_f32", 4, 5)
P(f"""
    v_add_u32 v3, s11, v6
    {EX(0x101)}
    ds_write_b32 v3, v4 offset:{WL}
    s_mov_b64 exec, -1
""")
cnt_add(C_L, 3, 5)
P(f"""
    v_cvt_pk_bf16_f32 v{R}, v{R}, v{R}
    v_and_b32 v4, 7, v0
    v_lshrrev_b32 v5, 1, v4
    v_and_b32 v4, 1, v4
    v_mov_b32 v6, 0xffff
    v_mov_b32 v7, 0xffff0000
    v_cmp_eq_u32 vcc, 1, v4
    s_nop 1
    v_cndmask_b32 v6, v6, v7, vcc
""")
for t in range(4):
    P(f"    v_cmp_eq_u32 vcc, {t}, v5\n    s_nop 1\n    v_cndmask_b32 v{112+t}, 0, v6, vcc")
for i in range(8):
    P(f"""
    v_mov_b32_dpp v{116+(i&1)}, v{R} row_newbcast:{i} row_mask:0xf bank_mask:0x3
    v_mov_b32_dpp v{116+(i&1)}, v{R} row_newbcast:{8+i} row_mask:0xf bank_mask:0xc""")
    for t in range(4):
        P(f"    v_and_b32 v{KR+4*i+t}, v{116+(i&1)}, v{112+t}")
P("    s_mov_b32 s77, 1\n    s_setpc_b64 s[74:75]")
P(f"""
L_end:
    s_endpgm
.section .rodata,"a"
.p2align 6
.amdhsa_kernel {NAME}_kernel
  .amdhsa_next_free_vgpr 128
  .amdhsa_next_free_sgpr 102
  .amdhsa_accum_offset 128
  .amdhsa_group_segment_fixed_size 0
  .amdhsa_kernarg_size 104
  .amdhsa_user_sgpr_count 2
  .amdhsa_user_sgpr_kernarg_segment_ptr 1
  .amdhsa_system_sgpr_workgroup_id_x 1
.end_amdhsa_kernel""")
print("\n".join(out))
```

```python
import sys
NAME = "parallel_sum__sliding_block_cached__mixer_channel_mlp__decode"
STAMPS = "--stamps" in sys.argv
NOPOLL = "--nopoll" in sys.argv
PACE = 3; PACE2 = None; HPACE = 3; PRE = 3; SPRE = 0; NB = 3; MID = 0; PIPEH1 = 1; VT = 15; LAZY = 1; TOLATE = 1; TMLATE = 1; PRIO = 0; SLP = 3; BSLP = 8; HSLP = 8; TOAT = -1; PREF = 0
for a in sys.argv[1:]:
    if a.startswith("--pace="): PACE = int(a.split("=")[1])
    if a.startswith("--pace2="): PACE2 = int(a.split("=")[1])
    if a.startswith("--hpace="): HPACE = int(a.split("=")[1])
    if a.startswith("--pre="): PRE = int(a.split("=")[1])
    if a.startswith("--spre="): SPRE = int(a.split("=")[1])
    if a.startswith("--nb="): NB = int(a.split("=")[1])
    if a.startswith("--mid="): MID = int(a.split("=")[1])
    if a.startswith("--vt="): VT = int(a.split("=")[1])
    if a.startswith("--lazy="): LAZY = int(a.split("=")[1])
    if a.startswith("--tolate="): TOLATE = int(a.split("=")[1])
    if a.startswith("--prio="): PRIO = int(a.split("=")[1])
    if a.startswith("--bslp="): BSLP = int(a.split("=")[1])
    if a.startswith("--toat="): TOAT = int(a.split("=")[1])
    if a.startswith("--pref="): PREF = int(a.split("=")[1])
    if a.startswith("--hslp="): HSLP = int(a.split("=")[1])
    if a.startswith("--slp="): SLP = int(a.split("=")[1])
    if a.startswith("--tmlate="): TMLATE = int(a.split("=")[1])
if PACE2 is None: PACE2 = PACE
SPIN = "1" if NOPOLL else "0x40000"

QP_OFF, HP_OFF, OPD_OFF, OPM_OFF, FPA_OFF, FPB_OFF, STAMP_OFF = 0x1000, 0x12000, 0x20000, 0x60000, 0x64000, 0xB0000, 0x200000
C_G1, C_Q, C_M, C_G2, C_PV, C_G3, C_H, C_L, C_VI, C_KI, C_O, C_PA, C_RA, C_RB = 0, 4, 8, 16, 20, 24, 28, 32, 36, 40, 44, 48, 52, 56
XN, Y, QL, WM, WL, HL, OL, PV = 0x100, 0xB00, 0x1500, 0x1700, 0x1740, 0x1800, 0x1900, 0x2000
PQ, PH, PBP, PA, RA, RB = 0x4000, 0x5000, 0x6000, 0x8000, 0xD000, 0xD800
TQ, TH = 0xE000, 0x12800
LDS_BYTES = 0x18800
RED0 = 238
TORS = [100, 104, 108, 120]

out = []
def P(s=""):
    for line in s.strip("\n").split("\n"):
        out.append(line)
uid = [0]
def L(base):
    uid[0] += 1
    return f"L_{base}_{uid[0]}"
def STAMP(idx):
    if STAMPS:
        P(f"    s_memrealtime s[{84+2*idx}:{85+2*idx}]")
def srd(d, ptr, nbytes):
    P(f"""
    s_mov_b32 s{d}, s{ptr}
    s_and_b32 s{d+1}, s{ptr+1}, 0xffff
    s_mov_b32 s{d+2}, {nbytes}
    s_mov_b32 s{d+3}, 0x00020000""")
def EX(mask):
    return f"s_mov_b32 exec_lo, {hex(mask & 0xffffffff)}\n    s_mov_b32 exec_hi, {hex(mask >> 32)}"
def rowreduce(op, v):
    for ror in (8, 4, 2, 1):
        P(f"    s_nop 1\n    {op}_dpp v{v}, v{v}, v{v} row_ror:{ror} row_mask:0xf bank_mask:0xf")
def crossrow(op, v):
    P(f"""
    s_nop 0
    v_readlane_b32 s80, v{v}, 0
    v_readlane_b32 s81, v{v}, 16
    v_readlane_b32 s82, v{v}, 32
    v_readlane_b32 s83, v{v}, 48
    v_mov_b32 v{v}, s80
    {op} v{v}, s81, v{v}
    {op} v{v}, s82, v{v}
    {op} v{v}, s83, v{v}""")
def cnt_add(off, va, vb):
    P(f"""
    s_waitcnt lgkmcnt(0)
    v_mov_b32 v{va}, {off}
    v_mov_b32 v{vb}, 1
    s_mov_b64 exec, 1
    ds_add_u32 v{va}, v{vb}
    s_mov_b64 exec, -1""")
def cnt_wait(off, target, vt, sleep=1):
    l0, l1 = L("cw"), L("cwd")
    P(f"""
    s_mov_b32 s79, 0x40000
{l0}:
    v_mov_b32 v{vt}, {off}
    ds_read_b32 v{vt}, v{vt}
    s_waitcnt lgkmcnt(0)
    v_readfirstlane_b32 s78, v{vt}
    s_cmp_ge_u32 s78, {target}
    s_cbranch_scc1 {l1}
    {"s_sleep %d" % sleep if sleep else ""}
    s_sub_u32 s79, s79, 1
    s_cmp_lg_u32 s79, 0
    s_cbranch_scc1 {l0}
{l1}:""")
def bf16r2(a, b, t):
    P(f"""
    v_cvt_pk_bf16_f32 v{t}, v{a}, v{b}
    v_lshlrev_b32 v{a}, 16, v{t}
    v_and_b32 v{b}, 0xffff0000, v{t}""")
def bf16r1(a):
    P(f"""
    v_cvt_pk_bf16_f32 v{a}, v{a}, v{a}
    v_lshlrev_b32 v{a}, 16, v{a}""")
def unpack4(src, dst):
    P(f"""
    v_lshlrev_b32 v{dst}, 16, v{src}
    v_and_b32 v{dst+1}, 0xffff0000, v{src}
    v_lshlrev_b32 v{dst+2}, 16, v{src+1}
    v_and_b32 v{dst+3}, 0xffff0000, v{src+1}""")
def tag4(r):
    for k in range(4):
        P(f"    v_and_or_b32 v{r+k}, v{r+k}, v1, s{64+k}")
def untag4(r):
    for k in range(4):
        P(f"    v_and_b32 v{r+k}, v1, v{r+k}")
def check(regs, t, okl):
    first = True
    for r in regs:
        if first:
            P(f"""
    v_xor_b32 v{t}, s64, v{r}
    v_xor_b32 v{t+1}, s65, v{r+1}
    v_xor_b32 v{t+2}, s66, v{r+2}
    v_or3_b32 v{t}, v{t}, v{t+1}, v{t+2}
    v_xor_b32 v{t+1}, s67, v{r+3}
    v_or_b32 v{t}, v{t}, v{t+1}""")
            first = False
        else:
            P(f"""
    v_xor_b32 v{t+1}, s64, v{r}
    v_xor_b32 v{t+2}, s65, v{r+1}
    v_or3_b32 v{t}, v{t}, v{t+1}, v{t+2}
    v_xor_b32 v{t+1}, s66, v{r+2}
    v_xor_b32 v{t+2}, s67, v{r+3}
    v_or3_b32 v{t}, v{t}, v{t+1}, v{t+2}""")
    P(f"""
    v_and_b32 v{t}, 0xff, v{t}
    v_cmp_ne_u32 vcc, 0, v{t}
    s_nop 1
    s_cbranch_vccz {okl}""")
def polltail(lp, sleep):
    P(f"""
    {"s_sleep %d" % sleep if sleep else ""}
    s_sub_u32 s79, s79, 1
    s_cmp_lg_u32 s79, 0
    s_cbranch_scc1 {lp}""")
def pipe_poll(name, issue, ngran, bufs, dst, t):
    nb = len(bufs)
    lp = L(name); done = L(name + "d")
    oks = [L(name + "ok") for _ in bufs]
    P(f"    s_mov_b32 s79, {SPIN}")
    for b in bufs:
        issue(b)
        P("    s_sleep 2")
    P(f"{lp}:")
    for k, b in enumerate(bufs):
        P(f"    s_waitcnt vmcnt({(nb-1)*ngran})")
        check([b + 4 * g for g in range(ngran)], t, oks[k])
        issue(b)
    P(f"""
    s_sub_u32 s79, s79, 1
    s_cmp_lg_u32 s79, 0
    s_cbranch_scc1 {lp}""")
    for k, b in enumerate(bufs):
        P(f"{oks[k]}:")
        if b != dst:
            for r in range(4 * ngran):
                P(f"    v_mov_b32 v{dst+r}, v{b+r}")
        if k != nb - 1:
            P(f"    s_branch {done}")
    P(f"{done}:")
def allreduce_rows4(r, t):
    for k in range(4): P(f"    v_mov_b32 v{t+k}, v{r+k}")
    P("    s_nop 1")
    for k in range(4): P(f"    v_permlane16_swap_b32 v{r+k}, v{t+k}")
    for k in range(4): P(f"    v_add_f32 v{r+k}, v{r+k}, v{t+k}")
    for k in range(4): P(f"    v_mov_b32 v{t+k}, v{r+k}")
    P("    s_nop 1")
    for k in range(4): P(f"    v_permlane32_swap_b32 v{r+k}, v{t+k}")
    for k in range(4): P(f"    v_add_f32 v{r+k}, v{r+k}, v{t+k}")
E = 8
def layernorm(ldsoff):
    P(f"    v_add_f32 v4, v{E}, v{E+1}")
    for k in range(2, 10):
        P(f"    v_add_f32 v4, v4, v{E+k}")
    rowreduce("v_add_f32", 4); crossrow("v_add_f32", 4)
    P(f"    s_mov_b32 s10, 0x3ae38e39\n    v_mul_f32 v4, s10, v4      ; mean")
    P("    v_mov_b32 v5, 0")
    for k in range(10):
        P(f"    v_sub_f32 v6, v{E+k}, v4")
        if k >= 8:
            P("    v_mul_f32 v6, v6, v30")
        P("    v_fmac_f32 v5, v6, v6")
    rowreduce("v_add_f32", 5); crossrow("v_add_f32", 5)
    P("    v_mul_f32 v5, s10, v5      ; var")
    bf16r2(4, 5, 6)
    P("    v_add_f32 v5, 0x3727c5ac, v5")
    bf16r1(5)
    P("    v_sqrt_f32 v5, v5\n    s_nop 0")
    bf16r1(5)
    P("    v_rcp_f32 v7, v5\n    s_nop 0")
    for k in range(0, 10, 2):
        a, b = E + k, E + k + 1
        P(f"    v_sub_f32 v{a}, v{a}, v4\n    v_sub_f32 v{b}, v{b}, v4")
        bf16r2(a, b, 6)
        for t in (a, b):
            P(f"""
    v_mul_f32 v6, v{t}, v7
    v_fma_f32 v{t}, -v6, v5, v{t}
    v_fma_f32 v{t}, v{t}, v7, v6""")
        bf16r2(a, b, 6)
    P(f"    v_mul_f32 v{E+8}, v{E+8}, v30\n    v_mul_f32 v{E+9}, v{E+9}, v30")
    if ldsoff is not None:
        P(f"""
    v_lshlrev_b32 v6, 5, v0
    v_lshlrev_b32 v7, 3, v0
    ds_write_b128 v6, v[{E}:{E+3}] offset:{ldsoff}
    ds_write_b128 v6, v[{E+4}:{E+7}] offset:{ldsoff+16}
    ds_write_b64 v7, v[{E+8}:{E+9}] offset:{ldsoff+2048}""")
def tile_dma(srdn, stride_log_or_mul, nrows, ldsbase, stride):
    P(f"""
    v_lshrrev_b32 v4, 3, v0
    s_mov_b32 s14, {stride}
    v_mul_lo_u32 v4, v4, s14
    v_and_b32 v5, 7, v0
    v_lshl_add_u32 v4, v5, 4, v4
    s_mul_i32 s12, s8, {nrows*128}
    s_add_u32 s12, s12, {ldsbase}""")
    nl = (nrows + 7) // 8
    for i in range(nl):
        rem = nrows - 8 * i
        if rem < 8:
            P("    " + EX((1 << (8 * rem)) - 1))
        P(f"""
    s_mov_b32 m0, s12
    s_nop 0
    buffer_load_dwordx4 v4, s[{srdn}:{srdn+3}], s11 offen nt lds
    s_add_u32 s11, s11, {8*stride}
    s_add_u32 s12, s12, 1024""")
        if rem < 8:
            P("    s_mov_b64 exec, -1")
    return nl
def tile_gemv(nrows, ldsbase, multsreg, multoff, partoff, cntoff, pub_sexpr_code):
    n = nrows // 4
    P(f"""
    v_and_b32 v3, 15, v0
    v_lshrrev_b32 v4, 4, v0               ; ph
    s_mul_i32 s12, s8, {nrows*128}
    s_add_u32 s12, s12, {ldsbase}
    v_lshlrev_b32 v5, 7, v4
    v_lshl_add_u32 v5, v3, 3, v5
    v_add_u32 v5, s12, v5
    s_lshl_b32 s12, {multsreg}, 2
    v_lshl_add_u32 v6, v4, 2, s12
""")
    for i in range(n):
        P(f"    ds_read_b64 v[{32+2*i}:{33+2*i}], v5 offset:{512*i}\n    ds_read_b32 v{56+i}, v6 offset:{multoff+16*i}")
    P("    v_mov_b32 v20, 0\n    v_mov_b32 v21, 0\n    v_mov_b32 v22, 0\n    v_mov_b32 v23, 0")
    for i in range(n):
        P(f"    s_waitcnt lgkmcnt({min(15, 2*(n-1-i))})")
        unpack4(32 + 2 * i, 72)
        for k in range(4):
            P(f"    v_fmac_f32 v{20+k}, v{56+i}, v{72+k}")
    P(f"""
    s_lshl_b32 s12, s8, 10
    v_lshlrev_b32 v5, 8, v4
    v_lshl_add_u32 v5, v3, 4, v5
    v_add_u32 v5, s12, v5
    ds_write_b128 v5, v[20:23] offset:{partoff}
""")
    cnt_add(cntoff, 3, 4)
    skip = L("nos2")
    P(f"    s_cmp_eq_u32 s8, 0\n    s_cbranch_scc0 {skip}")
    cnt_wait(cntoff, 4, 3, sleep=0)
    P(f"""
    v_and_b32 v3, 15, v0
    v_lshlrev_b32 v3, 4, v3
    v_lshrrev_b32 v4, 4, v0
    v_lshl_add_u32 v3, v4, 10, v3
    ds_read_b128 v[20:23], v3 offset:{partoff}
    ds_read_b128 v[32:35], v3 offset:{partoff+256}
    ds_read_b128 v[36:39], v3 offset:{partoff+512}
    ds_read_b128 v[40:43], v3 offset:{partoff+768}
    s_waitcnt lgkmcnt(0)""")
    for k in range(4):
        P(f"    v_add_f32 v{20+k}, v{20+k}, v{32+k}\n    v_add_f32 v{36+k}, v{36+k}, v{40+k}")
    for k in range(4):
        P(f"    v_add_f32 v{20+k}, v{20+k}, v{36+k}")
    allreduce_rows4(20, 32)
    tag4(20)
    P(pub_sexpr_code)
    P(f"""
    {EX(0xffff)}
    buffer_store_dwordx4 v[20:23], v2, s[44:47], s11 offen sc1
    s_mov_b64 exec, -1
{skip}:""")
def mf_masks():
    P(f"""
    v_and_b32 v4, 7, v0
    v_lshrrev_b32 v5, 1, v4
    v_and_b32 v4, 1, v4
    v_mov_b32 v6, 0xffff
    v_mov_b32 v7, 0xffff0000
    v_cmp_eq_u32 vcc, 1, v4
    s_nop 1
    v_cndmask_b32 v6, v6, v7, vcc
    v_and_b32 v4, 8, v0
    v_cmp_eq_u32 vcc, 0, v4
    s_nop 1
    v_cndmask_b32 v6, 0, v6, vcc""")
    for t in range(4):
        P(f"    v_cmp_eq_u32 vcc, {t}, v5\n    s_nop 1\n    v_cndmask_b32 v{112+t}, 0, v6, vcc")
def mf_gemv(ng, wreg, multoff, fp_off):
    P(f"    v_lshrrev_b32 v3, 4, v0\n    v_lshlrev_b32 v3, 2, v3")
    for G in range(ng):
        P(f"    ds_read_b32 v{72+G}, v3 offset:{multoff+16*G}")
    P("    v_mov_b32 v8, 0\n    v_mov_b32 v9, 0\n    v_mov_b32 v10, 0\n    v_mov_b32 v11, 0")
    P("    s_waitcnt vmcnt(0) lgkmcnt(0)")
    for G in range(ng):
        f = 16 + 4 * (G % 3)
        P(f"    v_cvt_pk_bf16_f32 v{72+G}, v{72+G}, v{72+G}")
        for t in range(4):
            P(f"    v_and_b32 v{f+t}, v{72+G}, v{112+t}")
        P(f"    s_nop 1\n    v_mfma_f32_16x16x32_bf16 v[8:11], v[{f}:{f+3}], v[{wreg+4*G}:{wreg+4*G+3}], v[8:11]")
    P(f"""
    v_and_b32 v4, 15, v0
    v_lshlrev_b32 v4, 5, v4
    v_lshrrev_b32 v5, 4, v0
    v_lshl_add_u32 v4, v5, 4, v4          ; (8pi + 4g2)*4
    s_mul_i32 s11, s6, 2304
    s_lshl_b32 s12, s72, 1
    s_add_u32 s11, s11, s12
    s_lshl_b32 s12, s9, 9
    s_add_u32 s11, s11, s12
    s_add_u32 s11, s11, {fp_off}
    s_nop 3""")
    tag4(8)
    P(f"""
    s_mov_b32 exec_lo, s68
    s_mov_b32 exec_hi, 0
    buffer_store_dwordx4 v[8:11], v4, s[44:47], s11 offen sc1
    s_mov_b64 exec, -1""")
def mf_loads(ng, wreg, srdn, rowbase_code, pace):
    P(rowbase_code)
    P(f"""
    s_mul_i32 s11, s11, 1152
    s_add_u32 s11, s11, s72
    s_lshl_b32 s12, s9, 8
    s_add_u32 s11, s11, s12
    v_lshrrev_b32 v4, 4, v0
    v_mul_u32_u24 v4, 1152, v4
    v_and_b32 v5, 15, v0
    v_lshl_add_u32 v4, v5, 4, v4
    s_mov_b32 exec_lo, s68
    s_mov_b32 exec_hi, s68""")
    for G in range(ng):
        if pace and G >= pace:
            P(f"    s_waitcnt vmcnt({pace-1})")
        P(f"    buffer_load_dwordx4 v[{wreg+4*G}:{wreg+4*G+3}], v4, s[{srdn}:{srdn+3}], s11 offen nt\n    s_add_u32 s11, s11, 4608")
    P("    s_mov_b64 exec, -1")
def blk_setup(areg_expr, skiplabel):
    P(f"""
    {areg_expr}
    s_cmp_eq_u32 s9, 2
    s_cselect_b32 s12, s7, 0
    s_cmp_lg_u32 s12, 0
    s_cbranch_scc1 {skiplabel}
    s_cmp_eq_u32 s9, 2
    s_cselect_b32 s68, 0x00ff00ff, -1""")
def tags_ready():
    P(f"""
    s_add_u32 s42, s42, 1
    s_and_b32 s64, s42, 0xff
    s_bfe_u32 s65, s42, 0x80008
    s_bfe_u32 s66, s42, 0x80010
    s_lshr_b32 s67, s42, 24
    s_add_u32 s65, s65, s64
    s_add_u32 s66, s66, s64
    s_add_u32 s67, s67, s64
    s_and_b32 s65, s65, 0xff
    s_and_b32 s66, s66, 0xff
    s_and_b32 s67, s67, 0xff""")
def xprep(nafter):
    P(f"""
    v_cmp_gt_u32 vcc, 32, v0
    v_mov_b32 v30, 0
    v_mov_b32 v31, 1.0
    s_nop 0
    v_cndmask_b32 v30, v30, v31, vcc
    s_waitcnt vmcnt({nafter})
""")
    STAMP(1)
    unpack4(24, E); unpack4(26, E + 4)
    P(f"    v_lshlrev_b32 v{E+8}, 16, v28\n    v_and_b32 v{E+9}, 0xffff0000, v28")
def to_loads():
    P(f"""
    s_lshr_b32 s11, s2, 1                 ; rg
    s_lshl_b32 s11, s11, 5
    s_lshl_b32 s12, s15, 2
    s_add_u32 s11, s11, s12
    s_mul_i32 s11, s11, 1152
    s_add_u32 s11, s11, s72               ; + ch*640
    s_mov_b64 exec, s[70:71]
    buffer_load_dwordx4 v[{TORS[0]}:{TORS[0]+3}], v2, s[60:63], s11 offen nt
    buffer_load_dwordx4 v[{TORS[1]}:{TORS[1]+3}], v2, s[60:63], s11 offen offset:1152 nt
    buffer_load_dwordx4 v[{TORS[2]}:{TORS[2]+3}], v2, s[60:63], s11 offen offset:2304 nt
    buffer_load_dwordx4 v[{TORS[3]}:{TORS[3]+3}], v2, s[60:63], s11 offen offset:3456 nt
    s_mov_b64 exec, -1""")

P(f"""; fused decode kernel: LN -> {{q-proj -> sliding-window GQA attention -> o-proj}} + {{LN -> MLP}} + residual
; @launch grid=(256,1,1) block=(1024,1,1) lds={LDS_BYTES}
.amdgcn_target "amdgcn-amd-amdhsa--gfx950"
.text
.globl {NAME}_kernel
.p2align 8
.type {NAME}_kernel,@function
{NAME}_kernel:
    s_cmp_ge_u32 s2, 256
    s_cbranch_scc1 L_end""")
STAMP(0)
P(f"""
    s_load_dwordx16 s[16:31], s[0:1], 0
    s_load_dwordx8 s[32:39], s[0:1], 64
    s_load_dwordx2 s[40:41], s[0:1], 96
    v_lshrrev_b32 v1, 6, v0
    v_and_b32 v0, 63, v0
    v_readfirstlane_b32 s3, v1
    v_lshlrev_b32 v2, 4, v0               ; lane*16
    v_mov_b32 v1, 0xffffff00
    s_lshr_b32 s4, s2, 4                  ; g
    s_and_b32 s5, s2, 15                  ; s
    s_lshr_b32 s6, s2, 1
    s_and_b32 s7, s2, 1                   ; ch
    s_mul_i32 s72, s7, 640
    s_mov_b32 s70, -1
    s_cmp_eq_u32 s7, 0
    s_cselect_b32 s71, 0xff, 0
    s_waitcnt lgkmcnt(0)
    s_load_dword s42, s[40:41], 0
""")
srd(44, 40, 0x40000000)
srd(60, 24, 4718592)
P("""
    s_cmp_ge_u32 s3, 8
    s_cbranch_scc1 L_stream
""")
srd(48, 16, 1152)
P(f"""
    s_and_b32 s8, s3, 3                   ; j
    v_lshlrev_b32 v3, 2, v0
    buffer_load_dwordx4 v[24:27], v2, s[48:51], 0 offen
    buffer_load_dword v28, v3, s[48:51], 0 offen offset:1024
    s_cmp_ge_u32 s3, 4
    s_cbranch_scc1 L_hh
""")
srd(52, 22, 4718592)
P(f"""
    s_lshr_b32 s9, s5, 2                  ; kq
    s_and_b32 s10, s5, 3                  ; cq
    s_mul_i32 s11, s9, 144
    s_mul_i32 s12, s8, 36
    s_add_u32 s73, s11, s12
    s_lshl_b32 s11, s73, 13               ; *8192
    s_lshl_b32 s12, s4, 9
    s_add_u32 s11, s11, s12
    s_lshl_b32 s12, s10, 7
    s_add_u32 s11, s11, s12
""")
nq = tile_dma(52, None, 36, TQ, 8192)
P(f"""
    s_cmp_lg_u32 s3, 0
    s_cbranch_scc1 L_h_noinit
    v_lshlrev_b32 v3, 2, v0
    v_mov_b32 v4, 0
    ds_write_b32 v3, v4
L_h_noinit:
    s_waitcnt lgkmcnt(0)
    s_barrier                             ; B0
""")
tags_ready()
xprep(nq)
layernorm(XN)
P("    s_waitcnt vmcnt(0) lgkmcnt(0)")
tile_gemv(36, TQ, "s73", XN, PQ, C_G1, f"""
    s_lshr_b32 s11, s5, 2
    s_lshl_b32 s11, s11, 14               ; kq*16384
    s_lshl_b32 s12, s4, 10                ; 256g*4
    s_add_u32 s11, s11, s12
    s_and_b32 s12, s5, 3
    s_lshl_b32 s12, s12, 8                ; 64cq*4
    s_add_u32 s11, s11, s12
    s_add_u32 s11, s11, {QP_OFF}""")
STAMP(2)
lp = L("h1poll"); ld = L("h1done")
P(f"""
    s_lshl_b32 s11, s4, 10
    s_lshl_b32 s12, s8, 8
    s_add_u32 s11, s11, s12
    s_add_u32 s11, s11, {QP_OFF}
    v_lshrrev_b32 v4, 4, v0
    v_lshlrev_b32 v4, 14, v4
    v_and_b32 v5, 15, v0
    v_lshl_add_u32 v4, v5, 4, v4
""")
if LAZY: cnt_wait(C_KI, 8, 3)
pipe_poll("h1p", lambda b: P(f"    buffer_load_dwordx4 v[{b}:{b+3}], v4, s[44:47], s11 offen sc1"), 1, [48 + 4 * i for i in range(NB)], 32, 40)
untag4(32)
allreduce_rows4(32, 36)
P(f"""
    v_cvt_pk_bf16_f32 v32, v32, v33
    v_cvt_pk_bf16_f32 v33, v34, v35
    v_lshlrev_b32 v5, 3, v5
    s_lshl_b32 s12, s8, 7
    v_add_u32 v5, s12, v5
    {EX(0xffff)}
    ds_write_b64 v5, v[32:33] offset:{QL}
    s_mov_b64 exec, -1
""")
cnt_add(C_Q, 3, 4)
STAMP(3)
P("""
    s_cmp_eq_u32 s8, 1
    s_cbranch_scc0 L_hq_noml
""")
cnt_wait(C_L, 8, 3, sleep=SLP)
P(f"""
    s_waitcnt vmcnt(0)
    v_lshrrev_b32 v4, 5, v0
    v_lshlrev_b32 v4, 5, v4               ; head*32
    ds_read_b128 v[48:51], v4 offset:{WL}
    ds_read_b128 v[52:55], v4 offset:{WL+16}
    ds_read_b128 v[56:59], v4 offset:{WM}
    ds_read_b128 v[60:63], v4 offset:{WM+16}
    s_waitcnt lgkmcnt(0)
    v_add_f32 v13, v48, v49
    v_add_f32 v14, v50, v51
    v_add_f32 v15, v52, v53
    v_add_f32 v13, v13, v14
    v_add_f32 v14, v54, v55
    v_add_f32 v13, v13, v15
    v_add_f32 v13, v13, v14
    v_max3_f32 v12, v56, v57, v58
    v_max3_f32 v12, v12, v59, v60
    v_max3_f32 v12, v12, v61, v62
    v_max_f32 v12, v12, v63
    v_mov_b32 v14, 0
    v_mov_b32 v15, 0
""")
tag4(12)
P(f"""
    v_lshlrev_b32 v4, 3, v4               ; head*256
    s_lshl_b32 s12, s4, 9
    s_lshl_b32 s13, s5, 4
    s_add_u32 s12, s12, s13
    s_add_u32 s12, s12, {OPM_OFF}
    {EX(0x100000001)}
    buffer_store_dwordx4 v[12:15], v4, s[44:47], s12 offen sc1
    s_mov_b64 exec, -1
L_hq_noml:
    s_cmp_eq_u32 s8, 0
    s_cbranch_scc1 L_hq0
""")
blk_setup("s_sub_u32 s9, s8, 1", "L_done")
mf_masks()
P("    s_waitcnt vmcnt(0)")
cnt_wait(C_PV, 8, 3, sleep=2)
mf_loads(8, 32, 60, "    s_lshl_b32 s11, s6, 5", 0)
cnt_wait(C_O, 1, 3, sleep=0)
mf_gemv(8, 32, OL, FPA_OFF)
STAMP(6)
P("    s_branch L_done\nL_hq0:")
lp = L("h2poll"); ld = L("h2done")
P(f"""
    s_lshl_b32 s12, s6, 11
    s_add_u32 s12, s12, {OPD_OFF}
    s_lshr_b32 s13, s6, 2
    s_lshl_b32 s13, s13, 8
    s_add_u32 s13, s13, {OPM_OFF}
    v_lshrrev_b32 v3, 3, v0
    v_lshlrev_b32 v3, 4, v3               ; s_sub*16
    v_lshrrev_b32 v5, 4, v0
    v_and_b32 v6, 1, v5
    v_lshrrev_b32 v5, 1, v5
    v_lshl_add_u32 v5, v6, 1, v5
    v_and_b32 v6, 7, v0
    v_lshl_add_u32 v5, v6, 2, v5
    v_lshlrev_b32 v5, 2, v5
    s_mov_b32 s10, 0x3fb8aa3b
""")
cnt_wait(C_PV, 8, 7, sleep=1)
STAMP(4)
P(f"""
    s_mov_b32 s79, {SPIN}
{lp}:
    buffer_load_dwordx4 v[24:27], v3, s[44:47], s13 offen sc1
    buffer_load_dwordx4 v[28:31], v3, s[44:47], s13 offen offset:128 sc1
    buffer_load_dwordx4 v[16:19], v2, s[44:47], s12 offen sc1
    buffer_load_dwordx4 v[20:23], v2, s[44:47], s12 offen offset:1024 sc1
    s_waitcnt vmcnt(0)""")
check([16, 20, 24, 28], 32, ld)
polltail(lp, 0)
P(f"{ld}:")
STAMP(5)
P(f"""
    v_and_b32 v24, v1, v24
    v_and_b32 v28, v1, v28
    v_max_f32 v32, v24, v28
    v_and_b32 v25, v1, v25
    v_and_b32 v29, v1, v29
    v_max_f32_dpp v32, v32, v32 row_ror:8 row_mask:0xf bank_mask:0xf
    v_mov_b32 v33, v32
    v_and_b32 v16, v1, v16
    v_and_b32 v17, v1, v17
    v_permlane16_swap_b32 v32, v33
    v_max_f32 v32, v32, v33
    v_mov_b32 v33, v32
    v_and_b32 v18, v1, v18
    v_and_b32 v19, v1, v19
    v_permlane32_swap_b32 v32, v33
    v_max_f32 v32, v32, v33               ; global M
    v_sub_f32 v24, v24, v32
    v_sub_f32 v28, v28, v32
    v_mul_f32 v24, s10, v24
    v_mul_f32 v28, s10, v28
    v_exp_f32 v24, v24
    v_exp_f32 v28, v28
    v_and_b32 v20, v1, v20
    v_and_b32 v21, v1, v21
    v_and_b32 v22, v1, v22
    v_and_b32 v23, v1, v23
    v_mul_f32 v34, v24, v25
    v_fmac_f32 v34, v28, v29              ; L part
""")
for k in range(4):
    P(f"    v_mul_f32 v{16+k}, v24, v{16+k}\n    v_fmac_f32 v{16+k}, v28, v{20+k}")
P(f"""
    v_add_f32_dpp v34, v34, v34 row_ror:8 row_mask:0xf bank_mask:0xf
    v_permlane32_swap_b32 v16, v17
    v_permlane32_swap_b32 v18, v19
    v_mov_b32 v35, v34
    v_add_f32 v16, v16, v17
    v_add_f32 v18, v18, v19
    v_permlane16_swap_b32 v34, v35
    v_add_f32 v34, v34, v35
    v_permlane16_swap_b32 v16, v18
    v_mov_b32 v35, v34
    v_add_f32 v16, v16, v18
    s_nop 0
    v_permlane32_swap_b32 v34, v35
    v_add_f32 v34, v34, v35               ; L
    v_add_f32_dpp v16, v16, v16 row_ror:8 row_mask:0xf bank_mask:0xf
    v_rcp_f32 v35, v34
    s_nop 0
    v_mul_f32 v20, v16, v35
    v_fma_f32 v21, -v20, v34, v16
    v_fma_f32 v16, v21, v35, v20
    v_cvt_pk_bf16_f32 v16, v16, v16
    v_lshlrev_b32 v16, 16, v16
    s_mov_b32 s14, 0x00ff00ff
    s_mov_b32 s15, 0x00ff00ff
    s_mov_b64 exec, s[14:15]
    ds_write_b32 v5, v16 offset:{OL}
    s_mov_b64 exec, -1
""")
cnt_add(C_O, 3, 4)
P("    s_branch L_done")
P("L_hh:")
if PREF:
    P(f"""
    s_getpc_b64 s[76:77]
L_pc:
    s_sub_u32 s76, s76, L_pc-{NAME}_kernel
    s_subb_u32 s77, s77, 0
    s_lshl_b32 s9, s8, 12
    v_add_u32 v4, s9, v2
    global_load_dwordx4 v[100:103], v4, s[76:77]
    global_load_dwordx4 v[104:107], v4, s[76:77] offset:1024
    global_load_dwordx4 v[108:111], v4, s[76:77] offset:2048
    s_cmp_eq_u32 s8, 3
    s_cselect_b32 s9, 0, 3072
    v_add_u32 v4, s9, v4
    global_load_dwordx4 v[112:115], v4, s[76:77]
""")
srd(56, 28, 5308416)
srd(64+4, 32, 5308416)
out.pop(); out.pop(); out.pop(); out.pop()
srd(52, 32, 5308416)
srd(76-20, 28, 5308416)
P(f"""
    s_mov_b32 s75, 0
    s_cmp_ge_u32 s2, 216
    s_cbranch_scc1 L_hh_noth0
    s_mul_i32 s9, s2, 43691
    s_lshr_b32 s9, s9, 17                 ; cg = b/3
    s_mul_i32 s10, s9, 3
    s_sub_u32 s10, s2, s10                ; kq' = b%3
    s_mul_i32 s11, s10, 192
    s_mul_i32 s12, s8, 48
    s_add_u32 s73, s11, s12
    s_mul_i32 s11, s73, 9216
    s_lshl_b32 s12, s9, 7
    s_add_u32 s11, s11, s12
""")
nh = tile_dma(56, None, 48, TH, 9216)
P("L_hh_noth0:")
TMR = 84
P(f"""
    s_mul_i32 s11, s6, 36
    s_mul_i32 s12, s8, 9
    s_add_u32 s11, s11, s12
    s_mul_i32 s11, s11, 1152
    s_add_u32 s74, s11, s72
    s_waitcnt lgkmcnt(0)
    s_barrier                             ; B0
""")
tags_ready()
P("""
    s_cmp_ge_u32 s2, 216
    s_cbranch_scc1 L_hh_x2
""")
P(f"    s_waitcnt vmcnt({nh+4*PREF})\n    s_branch L_hh_x3\nL_hh_x2:\n    s_waitcnt vmcnt({4*PREF})\nL_hh_x3:")
xprep(63)
layernorm(None)
layernorm(Y)
P("""
    s_cmp_ge_u32 s2, 216
    s_cbranch_scc1 L_hh_noth1
    s_waitcnt vmcnt(0) lgkmcnt(0)
""")
tile_gemv(48, TH, "s73", Y, PH, C_G2, f"""
    s_mul_i32 s9, s2, 43691
    s_lshr_b32 s9, s9, 17                 ; cg
    s_mul_i32 s10, s9, 3
    s_sub_u32 s10, s2, s10                ; kq'
    s_mul_i32 s11, s10, 18432
    s_lshl_b32 s12, s9, 8
    s_add_u32 s11, s11, s12
    s_add_u32 s11, s11, {HP_OFF}""")
P("L_hh_noth1:")
STAMP(2)
lp = L("hhpoll"); ld = L("hhdone")
srd(56, 30, 9216)
P(f"""
    s_cmp_eq_u32 s8, 0
    s_cbranch_scc0 L_hh_nopoll
    s_mul_i32 s11, s6, 144
    s_add_u32 s11, s11, {HP_OFF}
    v_lshrrev_b32 v4, 4, v0
    s_mov_b32 s14, 18432
    v_mul_lo_u32 v4, v4, s14
    v_and_b32 v5, 15, v0
    v_lshl_add_u32 v4, v5, 4, v4
    v_lshlrev_b32 v6, 3, v5
    s_mul_i32 s13, s6, 72
    v_mov_b32 v32, 0
    v_mov_b32 v33, 0
    v_mov_b32 v34, 0
    v_mov_b32 v35, 0
    {EX(0x1ff)}
    buffer_load_dwordx2 v[44:45], v6, s[56:59], s13 offen
    {EX(0x01ff01ff01ff)}
    s_mov_b32 s79, {SPIN}
{lp}:
    buffer_load_dwordx4 v[32:35], v4, s[44:47], s11 offen sc1
    s_waitcnt vmcnt(0)""")
check([32], 40, ld)
polltail(lp, HSLP)
P(f"{ld}:\n    s_mov_b64 exec, -1")
untag4(32)
allreduce_rows4(32, 36)
bf16r2(32, 33, 40); bf16r2(34, 35, 40)
unpack4(44, 36)
for k in range(4):
    P(f"    v_add_f32 v{32+k}, v{32+k}, v{36+k}")
bf16r2(32, 33, 40); bf16r2(34, 35, 40)
P("    s_mov_b32 s12, 0x3d372713             ; 0.044715\n    s_mov_b32 s13, 0x40135761             ; 2*0.7978845608*log2(e)")
for k in range(4):
    x, t = 32 + k, 36 + k
    P(f"""
    v_mul_f32 v{t}, v{x}, v{x}
    v_mul_f32 v{t}, v{t}, v{x}
    v_fma_f32 v{t}, v{t}, s12, v{x}
    v_mul_f32 v{t}, s13, v{t}
    v_exp_f32 v{t}, v{t}
    s_nop 0
    v_add_f32 v{t}, 1.0, v{t}
    v_rcp_f32 v{t}, v{t}
    s_nop 0
    v_fma_f32 v{x}, -v{t}, v{x}, v{x}""")
bf16r2(32, 33, 40); bf16r2(34, 35, 40)
P(f"""
    v_lshlrev_b32 v5, 4, v5
    {EX(0x1ff)}
    ds_write_b128 v5, v[32:35] offset:{HL}
    s_mov_b64 exec, -1
""")
cnt_add(C_H, 3, 4)
P("L_hh_nopoll:")
cnt_wait(C_H, 1, 3, sleep=2*SLP)
STAMP(4)
cnt_wait(C_PV if TMLATE else C_VI, 8, 3, sleep=SLP)
P("    s_cmp_eq_u32 s8, 3\n    s_cbranch_scc1 L_hh_nob")
blk_setup("s_mov_b32 s9, s8", "L_hh_nob")
mf_masks()
mf_loads(9, 32, 52, "    s_mul_i32 s11, s6, 36", HPACE)
STAMP(3)
mf_gemv(9, 32, HL, FPB_OFF)
P("L_hh_nob:")
STAMP(5)
lp = L("bpoll"); ld = L("bdone")
P(f"""
    s_cmp_lt_u32 s2, {RED0}
    s_cbranch_scc1 L_done
    s_sub_u32 s9, s2, {RED0}              ; k
    v_lshrrev_b32 v3, 3, v0
    s_mov_b32 s14, 2304
    v_mul_lo_u32 v3, v3, s14
    v_and_b32 v4, 7, v0
    v_lshl_add_u32 v3, v4, 4, v3
    s_mul_i32 s11, s8, {32*2304}
    s_lshl_b32 s12, s9, 7
    s_add_u32 s11, s11, s12
    s_add_u32 s11, s11, {FPB_OFF}
    s_add_u32 s12, s11, {8*2304}
    s_add_u32 s13, s11, {16*2304}
    s_add_u32 s14, s11, {24*2304}
    s_mov_b32 s79, {SPIN}
{lp}:
    buffer_load_dwordx4 v[8:11], v3, s[44:47], s11 offen sc1
    buffer_load_dwordx4 v[12:15], v3, s[44:47], s12 offen sc1
    buffer_load_dwordx4 v[16:19], v3, s[44:47], s13 offen sc1
    buffer_load_dwordx4 v[20:23], v3, s[44:47], s14 offen sc1
    s_waitcnt vmcnt(0)""")
check([8, 12, 16, 20], 32, ld)
polltail(lp, BSLP)
P(f"{ld}:")
untag4(8); untag4(12); untag4(16); untag4(20)
for k in range(4):
    P(f"    v_add_f32 v{8+k}, v{8+k}, v{12+k}\n    v_add_f32 v{16+k}, v{16+k}, v{20+k}")
for k in range(4):
    P(f"    v_add_f32 v{8+k}, v{8+k}, v{16+k}")
P(f"""
    s_nop 1
    v_permlane32_swap_b32 v8, v9
    v_permlane32_swap_b32 v10, v11
    v_add_f32 v8, v8, v9
    v_add_f32 v10, v10, v11
    s_nop 1
    v_permlane16_swap_b32 v8, v10
    v_add_f32 v8, v8, v10
    s_nop 1
    v_add_f32_dpp v8, v8, v8 row_ror:8 row_mask:0xf bank_mask:0xf
    v_lshrrev_b32 v5, 4, v0
    v_and_b32 v6, 1, v5
    v_lshrrev_b32 v5, 1, v5
    v_lshl_add_u32 v5, v6, 1, v5
    v_lshl_add_u32 v5, v4, 2, v5
    v_lshlrev_b32 v5, 2, v5
    s_lshl_b32 s14, s8, 7
    v_add_u32 v5, s14, v5
    s_mov_b32 s14, 0x00ff00ff
    s_mov_b32 s15, 0x00ff00ff
    s_mov_b64 exec, s[14:15]
    ds_write_b32 v5, v8 offset:{RB}
    s_mov_b64 exec, -1
""")
cnt_add(C_RB, 3, 4)
P("    s_branch L_done")

KR, VR, Q0, Q1, X, A0, A1 = 8, 40, 72, 76, 80, 96, 104
P("L_stream:")
if PRIO: P("    s_setprio 3")
srd(48, 18, 0x10000000)
srd(52, 20, 0x10000000)
P(f"""
    s_sub_u32 s15, s3, 8                  ; w
    s_lshl_b32 s8, s4, 24
    s_lshl_b32 s9, s5, 16
    s_add_u32 s8, s8, s9
    s_add_u32 s8, s8, 0xF00000
    s_lshl_b32 s9, s15, 10
    s_add_u32 s8, s8, s9
    s_add_u32 s9, s8, 4096
""")
def kvload(srdn, base, i):
    P(f"    s_add_u32 s9, s8, {8192*i}\n    buffer_load_dwordx4 v[{base+4*i}:{base+4*i+3}], v2, s[{srdn}:{srdn+3}], s9 offen nt")
seq = [(48, KR, i) for i in range(8)] + [(52, VR, i) for i in range(8)]
for n in range(SPRE): kvload(*seq[n])
P("""
    s_waitcnt lgkmcnt(0)
    s_barrier                             ; B0
""")
for n in range(SPRE, PACE): kvload(*seq[n])
tags_ready()
nxt = [PACE]
def issue_next():
    n = nxt[0]
    if n >= 16: return
    P(f"    s_waitcnt vmcnt({(PACE if n < 8 else PACE2)-1})")
    kvload(*seq[n])
    if n == TOAT: to_loads()
    if n == 7: cnt_add(C_KI, 3, 4)
    if n == VT: cnt_add(C_VI, 3, 4)
    nxt[0] += 1
P("    s_mov_b32 s77, 0")
while nxt[0] < 16:
    issue_next()
    n = nxt[0] - 1
    if n >= 8 + max(PACE, PACE2) - 1 and n < 15:
        sk = L("sk")
        P(f"""
    s_cmp_lg_u32 s77, 0
    s_cbranch_scc1 {sk}
    v_mov_b32 v3, {C_Q}
    ds_read_b32 v3, v3
    s_waitcnt lgkmcnt(0)
    v_readfirstlane_b32 s78, v3
    s_cmp_ge_u32 s78, 4
    s_cbranch_scc0 {sk}
    s_call_b64 s[74:75], L_scores
{sk}:""")
STAMP(1)
P("""
    s_cmp_lg_u32 s77, 0
    s_cbranch_scc1 L_s_scored
""")
cnt_wait(C_Q, 4, 3)
P("""
    s_call_b64 s[74:75], L_scores
L_s_scored:
""")
if not TOLATE and TOAT < 0: to_loads()
for j in range(4):
    P(f"    v_mov_b32 v{A0+j}, 0")
P(f"""
    v_lshrrev_b32 v3, 5, v0
    v_lshlrev_b32 v3, 9, v3
    v_and_b32 v4, 15, v0
    v_lshl_add_u32 v3, v4, 5, v3
    v_and_b32 v4, 16, v0
    v_add_u32 v3, v3, v4
    s_lshl_b32 s11, s15, 10
    v_add_u32 v118, s11, v3
""")
for i in range(8):
    P(f"    s_waitcnt vmcnt({7-i+(4 if (TOAT >= 8+i or (TOAT < 0 and not TOLATE)) else 0)})")
    P(f"    v_mfma_f32_16x16x32_bf16 v[{A0}:{A0+3}], v[{KR+4*i}:{KR+4*i+3}], v[{VR+4*i}:{VR+4*i+3}], v[{A0}:{A0+3}]")
STAMP(3)
P(f"""
    s_nop 7
    s_nop 1
    ds_write_b128 v118, v[{A0}:{A0+3}] offset:{PV}
""")

cnt_add(C_PV, 3, 4)
P(f"""
    s_cmp_lg_u32 s15, 0
    s_cbranch_scc1 L_s_w0skip
""")
cnt_wait(C_PV, 8, 3, sleep=0)
for w in range(8):
    P(f"    ds_read_b128 v[{8+4*w}:{11+4*w}], v2 offset:{PV+1024*w}")
P(f"""
    v_lshrrev_b32 v5, 3, v0
    v_lshlrev_b32 v5, 11, v5
    v_and_b32 v6, 7, v0
    v_lshl_add_u32 v5, v6, 4, v5
    s_lshl_b32 s12, s4, 14
    s_lshl_b32 s13, s5, 7
    s_add_u32 s12, s12, s13
    s_add_u32 s12, s12, {OPD_OFF}
    s_waitcnt lgkmcnt(0)
""")
for k in range(4):
    P(f"    v_add_f32 v{8+k}, v{8+k}, v{12+k}\n    v_add_f32 v{16+k}, v{16+k}, v{20+k}\n    v_add_f32 v{24+k}, v{24+k}, v{28+k}\n    v_add_f32 v{32+k}, v{32+k}, v{36+k}")
for k in range(4):
    P(f"    v_add_f32 v{8+k}, v{8+k}, v{16+k}\n    v_add_f32 v{24+k}, v{24+k}, v{32+k}")
for k in range(4):
    P(f"    v_add_f32 v{8+k}, v{8+k}, v{24+k}")
tag4(8)
P(f"""
    buffer_store_dwordx4 v[8:11], v5, s[44:47], s12 offen sc1
""")
STAMP(4)
P("L_s_w0skip:")
P(f"""
    s_cmp_lt_u32 s2, {RED0}
    s_cbranch_scc1 L_done
    s_sub_u32 s8, s2, {RED0}              ; k: columns 32k..32k+31
    v_lshrrev_b32 v3, 3, v0
    s_mov_b32 s14, 2304
    v_mul_lo_u32 v3, v3, s14
    v_and_b32 v4, 7, v0
    v_lshl_add_u32 v3, v4, 4, v3
    s_mul_i32 s11, s15, {16*2304}
    s_lshl_b32 s12, s8, 7
    s_add_u32 s11, s11, s12
    s_add_u32 s11, s11, {FPA_OFF}
    s_add_u32 s12, s11, {8*2304}
""")
srd(48, 16, 1152)
srd(52, 34, 1152)
srd(56, 36, 1152)
lp = L("h3poll"); ld = L("h3done")
P(f"""
    s_lshl_b32 s13, s8, 6
    v_lshlrev_b32 v6, 1, v0
    buffer_load_ushort v40, v6, s[48:51], s13 offen
    buffer_load_ushort v41, v6, s[52:55], s13 offen
    v_lshrrev_b32 v5, 4, v0
    v_and_b32 v6, 1, v5
    v_lshrrev_b32 v5, 1, v5
    v_lshl_add_u32 v5, v6, 1, v5
    v_lshl_add_u32 v5, v4, 2, v5          ; column 0..31
    v_lshlrev_b32 v5, 2, v5
    s_lshl_b32 s14, s15, 7
    v_add_u32 v5, s14, v5
    s_mov_b32 s79, {SPIN}
{lp}:
    buffer_load_dwordx4 v[8:11], v3, s[44:47], s11 offen sc1
    buffer_load_dwordx4 v[12:15], v3, s[44:47], s12 offen sc1
    s_waitcnt vmcnt(0)""")
check([8, 12], 16, ld)
polltail(lp, 0)
P(f"{ld}:")
untag4(8); untag4(12)
for k in range(4):
    P(f"    v_add_f32 v{8+k}, v{8+k}, v{12+k}")
P(f"""
    s_nop 1
    v_permlane32_swap_b32 v8, v9
    v_permlane32_swap_b32 v10, v11
    v_add_f32 v8, v8, v9
    v_add_f32 v10, v10, v11
    s_nop 1
    v_permlane16_swap_b32 v8, v10
    v_add_f32 v8, v8, v10
    s_nop 1
    v_add_f32_dpp v8, v8, v8 row_ror:8 row_mask:0xf bank_mask:0xf
    s_mov_b32 s10, 0x00ff00ff
    s_mov_b32 s11, 0x00ff00ff
    s_mov_b64 exec, s[10:11]
    ds_write_b32 v5, v8 offset:{RA}
    s_mov_b64 exec, -1
""")
cnt_add(C_RA, 3, 4)
P(f"""
    s_cmp_lg_u32 s15, 0
    s_cbranch_scc1 L_done
""")
cnt_wait(C_RB, 4, 3, sleep=0)
cnt_wait(C_RA, 8, 3, sleep=0)
P(f"""
    v_lshlrev_b32 v3, 2, v0
    v_and_b32 v3, 0x7f, v3
""")
for w in range(8):
    P(f"    ds_read_b32 v{8+w}, v3 offset:{RA+128*w}")
for w in range(4):
    P(f"    ds_read_b32 v{24+w}, v3 offset:{RB+128*w}")
P("    s_waitcnt lgkmcnt(0)")
for k in range(4):
    P(f"    v_add_f32 v{8+k}, v{8+k}, v{12+k}")
P("    v_add_f32 v24, v24, v25\n    v_add_f32 v26, v26, v27")
for k in range(2):
    P(f"    v_add_f32 v{8+k}, v{8+k}, v{10+k}")
P("    v_add_f32 v24, v24, v26\n    v_add_f32 v8, v8, v9")
bf16r2(8, 24, 4)
P("""
    v_lshlrev_b32 v40, 16, v40
    v_lshlrev_b32 v41, 16, v41
    v_add_f32 v8, v40, v8
    v_add_f32 v24, v24, v41
""")
bf16r2(8, 24, 4)
P(f"""
    v_add_f32 v8, v8, v24
    v_cvt_pk_bf16_f32 v8, v8, v8
    v_lshlrev_b32 v6, 1, v0
    {EX(0xffffffff)}
    buffer_store_short v8, v6, s[56:59], s13 offen
    s_mov_b64 exec, -1
    s_cmp_lg_u32 s8, 0
    s_cbranch_scc1 L_done
    v_mov_b32 v32, s42
    v_mov_b32 v34, 0
    s_mov_b64 exec, 1
    buffer_store_dword v32, v34, s[44:47], 0 offen
    s_mov_b64 exec, -1
L_done:
""")
STAMP(7)
if STAMPS:
    P(f"""
    s_waitcnt lgkmcnt(0)
    s_lshl_b32 s11, s2, 4
    s_add_u32 s11, s11, s3
    s_lshl_b32 s11, s11, 6
    s_add_u32 s11, s11, {STAMP_OFF}
    v_mov_b32 v3, 0
    s_mov_b64 exec, 1
""")
    for q in range(4):
        for k in range(4):
            P(f"    v_mov_b32 v{32+k}, s{84+4*q+k}")
        P(f"    buffer_store_dwordx4 v[32:35], v3, s[44:47], s11 offen offset:{16*q}\n    s_nop 1")
    P("    s_mov_b64 exec, -1")
P("    s_branch L_end\nL_scores:")
STAMP(2)
P(f"""
    v_and_b32 v3, 15, v0
    v_lshlrev_b32 v3, 4, v3
    ds_read_b128 v[{Q0}:{Q0+3}], v3 offset:{QL}
    ds_read_b128 v[{Q1}:{Q1+3}], v3 offset:{QL+256}
    s_waitcnt lgkmcnt(0)
""")
for i in range(8):
    k = KR + 4 * i
    P(f"""
    v_dot2_f32_bf16 v{X+i}, v{k}, v{Q0}, 0
    v_dot2_f32_bf16 v{X+8+i}, v{k}, v{Q1}, 0
    v_dot2_f32_bf16 v{X+i}, v{k+1}, v{Q0+1}, v{X+i}
    v_dot2_f32_bf16 v{X+8+i}, v{k+1}, v{Q1+1}, v{X+8+i}
    v_dot2_f32_bf16 v{X+i}, v{k+2}, v{Q0+2}, v{X+i}
    v_dot2_f32_bf16 v{X+8+i}, v{k+2}, v{Q1+2}, v{X+8+i}
    v_dot2_f32_bf16 v{X+i}, v{k+3}, v{Q0+3}, v{X+i}
    v_dot2_f32_bf16 v{X+8+i}, v{k+3}, v{Q1+3}, v{X+8+i}""")
P("    s_nop 3")
for v in range(8):
    P(f"    v_add_f32_dpp v{X+v}, v{X+v}, v{X+v} row_ror:8 row_mask:0xf bank_mask:0xf")
    P(f"    v_add_f32_dpp v{X+v}, v{X+v+8}, v{X+v+8} row_ror:8 row_mask:0xf bank_mask:0xc")
for v in range(4):
    P(f"    v_add_f32_dpp v{X+v}, v{X+v}, v{X+v} row_half_mirror row_mask:0xf bank_mask:0xf")
    P(f"    v_add_f32_dpp v{X+v}, v{X+v+4}, v{X+v+4} row_half_mirror row_mask:0xf bank_mask:0xa")
P(f"""
    s_mov_b32 s12, 0xcccccccc
    s_mov_b32 s13, 0xcccccccc
    s_mov_b32 s10, 0xaaaaaaaa
    s_mov_b32 s11, 0xaaaaaaaa
    v_add_f32_dpp v{X+8}, v{X}, v{X} quad_perm:[2,3,0,1] row_mask:0xf bank_mask:0xf
    v_add_f32_dpp v{X+9}, v{X+2}, v{X+2} quad_perm:[2,3,0,1] row_mask:0xf bank_mask:0xf
    v_add_f32_dpp v{X+10}, v{X+1}, v{X+1} quad_perm:[2,3,0,1] row_mask:0xf bank_mask:0xf
    v_add_f32_dpp v{X+11}, v{X+3}, v{X+3} quad_perm:[2,3,0,1] row_mask:0xf bank_mask:0xf
    v_cndmask_b32 v{X}, v{X+8}, v{X+9}, s[12:13]
    v_cndmask_b32 v{X+1}, v{X+10}, v{X+11}, s[12:13]
    s_nop 1
    v_add_f32_dpp v{X+8}, v{X}, v{X} quad_perm:[1,0,3,2] row_mask:0xf bank_mask:0xf
    v_add_f32_dpp v{X+9}, v{X+1}, v{X+1} quad_perm:[1,0,3,2] row_mask:0xf bank_mask:0xf
    v_cndmask_b32 v{X}, v{X+8}, v{X+9}, s[10:11]
""")
R = X
bf16r1(R)
P(f"    s_mov_b32 s10, 0x3db504f3          ; 128^-0.5\n    v_mul_f32 v{R}, s10, v{R}")
bf16r1(R)
def head_allreduce(op, v, t):
    P(f"""
    s_nop 1
    {op}_dpp v{v}, v{v}, v{v} quad_perm:[1,0,3,2] row_mask:0xf bank_mask:0xf
    s_nop 1
    {op}_dpp v{v}, v{v}, v{v} quad_perm:[2,3,0,1] row_mask:0xf bank_mask:0xf
    s_nop 1
    {op}_dpp v{v}, v{v}, v{v} row_half_mirror row_mask:0xf bank_mask:0xf
    v_mov_b32 v{t}, v{v}
    s_nop 1
    v_permlane16_swap_b32 v{v}, v{t}
    {op} v{v}, v{v}, v{t}
    v_mov_b32 v{t}, v{v}
    s_nop 1
    v_permlane32_swap_b32 v{v}, v{t}
    {op} v{v}, v{v}, v{t}""")
P(f"    v_mov_b32 v4, v{R}")
head_allreduce("v_max_f32", 4, 5)
P(f"""
    v_and_b32 v6, 8, v0
    v_lshlrev_b32 v6, 2, v6               ; head*32
    s_lshl_b32 s11, s15, 2
    v_add_u32 v3, s11, v6
    {EX(0x101)}
    ds_write_b32 v3, v4 offset:{WM}
    s_mov_b64 exec, -1
""")
cnt_add(C_M, 3, 5)
cnt_wait(C_M, 8, 3, sleep=0)
P(f"""
    ds_read_b128 v[112:115], v6 offset:{WM}
    ds_read_b128 v[116:119], v6 offset:{WM+16}
    s_waitcnt lgkmcnt(0)
    v_max3_f32 v4, v112, v113, v114
    v_max3_f32 v4, v4, v115, v116
    v_max3_f32 v4, v4, v117, v118
    v_max_f32 v4, v4, v119
    s_mov_b32 s10, 0x3fb8aa3b          ; log2(e)
    v_sub_f32 v{R}, v{R}, v4
    v_mul_f32 v{R}, s10, v{R}
    v_exp_f32 v{R}, v{R}
    s_nop 0
    v_mov_b32 v4, v{R}
""")
head_allreduce("v_add_f32", 4, 5)
P(f"""
    v_add_u32 v3, s11, v6
    {EX(0x101)}
    ds_write_b32 v3, v4 offset:{WL}
    s_mov_b64 exec, -1
""")
cnt_add(C_L, 3, 5)
P(f"""
    v_cvt_pk_bf16_f32 v{R}, v{R}, v{R}
    v_and_b32 v4, 7, v0
    v_lshrrev_b32 v5, 1, v4
    v_and_b32 v4, 1, v4
    v_mov_b32 v6, 0xffff
    v_mov_b32 v7, 0xffff0000
    v_cmp_eq_u32 vcc, 1, v4
    s_nop 1
    v_cndmask_b32 v6, v6, v7, vcc
""")
for t in range(4):
    P(f"    v_cmp_eq_u32 vcc, {t}, v5\n    s_nop 1\n    v_cndmask_b32 v{112+t}, 0, v6, vcc")
for i in range(8):
    P(f"""
    v_mov_b32_dpp v{116+(i&1)}, v{R} row_newbcast:{i} row_mask:0xf bank_mask:0x3
    v_mov_b32_dpp v{116+(i&1)}, v{R} row_newbcast:{8+i} row_mask:0xf bank_mask:0xc""")
    for t in range(4):
        P(f"    v_and_b32 v{KR+4*i+t}, v{116+(i&1)}, v{112+t}")
P("    s_mov_b32 s77, 1\n    s_setpc_b64 s[74:75]")
P(f"""
L_end:
    s_endpgm
.section .rodata,"a"
.p2align 6
.amdhsa_kernel {NAME}_kernel
  .amdhsa_next_free_vgpr 128
  .amdhsa_next_free_sgpr 102
  .amdhsa_accum_offset 128
  .amdhsa_group_segment_fixed_size 0
  .amdhsa_kernarg_size 104
  .amdhsa_user_sgpr_count 2
  .amdhsa_user_sgpr_kernarg_segment_ptr 1
  .amdhsa_system_sgpr_workgroup_id_x 1
.end_amdhsa_kernel""")
print("\n".join(out))
```
